```python
import torch

def _softmax(x, axis=-1):
    return torch.softmax(x, dim=axis)
def _gelu(x):
    return torch.nn.functional.gelu(x, approximate="tanh")
def _silu(x):
    return torch.nn.functional.silu(x)
def _sigmoid(x):
    return torch.sigmoid(x)
def _layernorm(x, axis=-1, eps=1e-5):
    m = x.mean(dim=axis, keepdim=True)
    v = x.var(dim=axis, keepdim=True, unbiased=False)
    return (x - m) / torch.sqrt(v + eps)
def _scatter_add(tgt, idx, src, axis=0):
    return tgt.clone().index_add_(axis, idx, src)
def _segment_sum(src, seg, n):
    out = torch.zeros((n,) + src.shape[1:], dtype=src.dtype)
    return out.index_add_(0, seg, src)
def _pad(x, pw):
    flat = tuple(v for pair in reversed(pw) for v in pair)
    return torch.nn.functional.pad(x, flat)

kernel_name = 'parallel_sum__ssm_conv_s5__dense_activation_mish__prompt'

def setup_inputs():

    _w = (lambda a: (lambda t: t.to(torch.bfloat16) if t.is_floating_point() else t)(torch.as_tensor(a)))
    def _A_setup():
        B, S, D = 1, 2048, 640
        P = D
        Lambda_re = -0.5 * (lambda _x: torch.exp(torch.as_tensor(_x)))((lambda *s: torch.randn(*s, dtype=torch.bfloat16) * 0.2)(P))
        Lambda_im = (lambda *s: torch.randn(*s, dtype=torch.bfloat16) * 0.8)(P) * 1.0
        B_re = (lambda *s: torch.randn(*s, dtype=torch.bfloat16) * 0.2)(P, D) * (D ** -0.5)
        B_im = (lambda *s: torch.randn(*s, dtype=torch.bfloat16) * 0.2)(P, D) * (D ** -0.5)
        C_re = (lambda *s: torch.randn(*s, dtype=torch.bfloat16) * 0.2)(D, P) * (P ** -0.5)
        C_im = (lambda *s: torch.randn(*s, dtype=torch.bfloat16) * 0.2)(D, P) * (P ** -0.5)
        log_dt = (lambda *s: torch.randn(*s, dtype=torch.bfloat16) * 0.2)(P) * 0.3 - 2.0
        Dskip = (lambda *s: torch.randn(*s, dtype=torch.bfloat16) * 0.05)(D)
        return {
            "x": _w((lambda *s: torch.randn(*s, dtype=torch.bfloat16) * 0.05)(B, S, D)),
            "Lambda_re": _w(Lambda_re),
            "Lambda_im": _w(Lambda_im),
            "B_re": _w(B_re),
            "B_im": _w(B_im),
            "C_re": _w(C_re),
            "C_im": _w(C_im),
            "log_dt": _w(log_dt),
            "Dskip": _w(Dskip),
        }
    _A_in = _A_setup()

    def _B_setup():
        B, S, D, F = 1, 2048, 640, 1728
        return {
            "x": _w((lambda *s: torch.randn(*s, dtype=torch.bfloat16) * 0.05)(B, S, D)),
            "w1": _w((lambda *s: torch.randn(*s, dtype=torch.bfloat16) * 0.8)(D, F) * (D ** -0.5)),
            "b1": _w((lambda *s: torch.randn(*s, dtype=torch.bfloat16) * 0.2)(F)),
            "w2": _w((lambda *s: torch.randn(*s, dtype=torch.bfloat16) * 0.2)(F, D) * (F ** -0.5)),
        }
    _B_in = _B_setup()

    return {
        "A_x": _A_in["x"],
        "A_Lambda_re": _A_in["Lambda_re"],
        "A_Lambda_im": _A_in["Lambda_im"],
        "A_B_re": _A_in["B_re"],
        "A_B_im": _A_in["B_im"],
        "A_C_re": _A_in["C_re"],
        "A_C_im": _A_in["C_im"],
        "A_log_dt": _A_in["log_dt"],
        "A_Dskip": _A_in["Dskip"],
        "B_x": _B_in["x"],
        "B_w1": _B_in["w1"],
        "B_b1": _B_in["b1"],
        "B_w2": _B_in["w2"],
    }

def reference(A_x, A_Lambda_re, A_Lambda_im, A_B_re, A_B_im, A_C_re, A_C_im, A_log_dt, A_Dskip, B_x, B_w1, B_b1, B_w2):
    def _A_ref(x, Lambda_re, Lambda_im, B_re, B_im, C_re, C_im, log_dt, Dskip):
        Bsz, L, H = x.shape
        Lam = Lambda_re + 1j * Lambda_im
        Bmat = B_re + 1j * B_im
        Cmat = C_re + 1j * C_im
        dt = torch.exp(log_dt)
        Lam_bar = torch.exp(dt * Lam)
        B_bar = ((Lam_bar - 1.0) / Lam)[:, None] * Bmat
        Bu = torch.einsum("bld,pd->blp", x + 0j, B_bar)
        h = torch.zeros_like(Bu[:, 0, :])
        hs = []
        for t in range(L):
            h = Lam_bar[None, :] * h + Bu[:, t, :]
            hs.append(h)
        hseq = torch.stack(hs, 1)
        y = 2.0 * torch.einsum("blp,dp->bld", hseq, Cmat).real + x * Dskip[None, None, :]
        return y

    def _B_ref(x, w1, b1, w2):
        h = torch.einsum("bsd,df->bsf", x, w1) + b1
        sp = torch.log1p(torch.exp(-torch.abs(h))) + torch.where(h > 0, h, torch.zeros_like(h))
        act = h * torch.tanh(sp)
        return torch.einsum("bsf,fd->bsd", act, w2)

    x = A_x
    xn = _layernorm(x, axis=-1)
    return x + _A_ref(xn, A_Lambda_re, A_Lambda_im, A_B_re, A_B_im, A_C_re, A_C_im, A_log_dt, A_Dskip) + _B_ref(xn, B_w1, B_b1, B_w2)
```

```python
import re

TRANS = ('v_exp_f32', 'v_log_f32', 'v_rcp_f32', 'v_rsq_f32', 'v_sqrt_f32', 'v_sin_f32', 'v_cos_f32')

_reg_re = re.compile(r'(?<![\w.])(-?\|?)([vas])(\d+|\[\d+:\d+\])')


def regs_of(tok):
    out = []
    tok = tok.strip()
    if tok in ('vcc', 'vcc_lo', 'vcc_hi'):
        return [('s', 106), ('s', 107)]
    if tok == 'm0':
        return [('s', 124)]
    if tok in ('exec',):
        return [('s', 126), ('s', 127)]
    m = re.fullmatch(r'-?(?:abs\()?\|?([vas])(\d+)\|?\)?', tok)
    if m:
        return [(m.group(1), int(m.group(2)))]
    m = re.fullmatch(r'-?(?:abs\()?\|?([vas])\[(\d+):(\d+)\]\|?\)?', tok)
    if m:
        return [(m.group(1), i) for i in range(int(m.group(2)), int(m.group(3)) + 1)]
    return out


class Inst:
    __slots__ = ('text', 'op', 'kind', 'w', 'r', 'c', 'ab', 'dpp', 'states', 'data', 'passes')

    def __init__(self, text):
        self.text = text
        t = text.split(';')[0].strip()
        self.w = set(); self.r = set(); self.c = set(); self.ab = set(); self.data = set()
        self.dpp = False; self.states = 1; self.passes = 0
        if not t or t.endswith(':') or t.startswith('.'):
            self.op = ''; self.kind = 'label' if t.endswith(':') else 'none'; self.states = 0
            return
        parts = t.split(None, 1)
        op = parts[0]; self.op = op
        rest = parts[1] if len(parts) > 1 else ''
        ops = []; depth = 0; cur = ''
        for ch in rest:
            if ch in '[(': depth += 1
            if ch in '])': depth -= 1
            if ch == ',' and depth == 0:
                ops.append(cur.strip()); cur = ''
            else:
                cur += ch
        if cur.strip(): ops.append(cur.strip())
        mods = ''
        if ops:
            sp = ops[-1].split(None, 1)
            ops[-1] = sp[0]
            if len(sp) > 1: mods = sp[1]
        R = lambda toks: set(x for tk in toks for x in regs_of(tk))
        if op == 's_nop':
            self.kind = 'nop'; self.states = int(ops[0], 0) + 1
        elif op.startswith('v_mfma'):
            self.kind = 'mfma'
            self.passes = 8 if '32x32x16' in op else 4
            self.w = R(ops[:1]); self.ab = R(ops[1:3]); self.c = R(ops[3:4]); self.r = self.ab | self.c
        elif op.startswith('v_cmp'):
            self.kind = 'valu'; self.w = R(ops[:1]); self.r = R(ops[1:])
        elif op.startswith('v_permlane') and 'swap' in op:
            self.kind = 'valu'; self.w = R(ops); self.r = R(ops); self.dpp = True
        elif op.startswith('v_readfirstlane') or op.startswith('v_readlane'):
            self.kind = 'rdlane'; self.w = R(ops[:1]); self.r = R(ops[1:])
        elif op.startswith('v_'):
            self.kind = 'trans' if op.replace('_e32', '').replace('_e64', '') in TRANS else 'valu'
            self.w = R(ops[:1]); self.r = R(ops[1:])
            if op.startswith('v_fmac') or op.startswith('v_dot2c'): self.r |= self.w
            if '_co_' in op: self.w |= R(ops[1:2])
            if op.endswith('_dpp') or 'quad_perm' in mods or 'row_' in mods: self.dpp = True
            if op.startswith('v_cndmask') and len(ops) == 3: self.r |= {('s', 106), ('s', 107)}
        elif op.startswith('ds_read') or op.startswith('ds_swizzle') or op.startswith('ds_bpermute'):
            self.kind = 'dsr'; self.w = R(ops[:1]); self.r = R(ops[1:])
        elif op.startswith('ds_'):
            self.kind = 'dsw'; self.r = R(ops)
        elif op.startswith('buffer_load') or op.startswith('global_load'):
            if ' lds' in (' ' + mods) or 'load_lds' in op:
                self.kind = 'dma'; self.r = R(ops) | {('s', 124)}
            else:
                self.kind = 'vload'; self.w = R(ops[:1]); self.r = R(ops[1:])
        elif op.startswith('buffer_store') or op.startswith('global_store') or 'atomic' in op:
            self.kind = 'vstore'; self.r = R(ops)
            if op.endswith('x4') or op.endswith('x3'):
                self.data = R(ops[:1]) if op.startswith('buffer') else R(ops[1:2])
        elif op.startswith('s_'):
            self.kind = 'salu'
            if op.startswith('s_cmp') or op.startswith('s_cbranch') or op.startswith('s_branch') or op in ('s_waitcnt', 's_barrier', 's_endpgm', 's_sleep', 's_setprio', 's_bitcmp1_b32', 's_bitcmp0_b32'):
                self.r = R(ops)
            else:
                self.w = R(ops[:1]); self.r = R(ops[1:])
        else:
            self.kind = 'other'


def need_states(p, c):
    n = 0
    pv = p.kind in ('valu', 'trans', 'rdlane')
    cv = c.kind in ('valu', 'trans', 'rdlane')
    cmem = c.kind in ('dsr', 'dsw', 'vload', 'vstore', 'dma')
    if pv:
        pw_v = {x for x in p.w if x[0] != 's'}
        pw_s = {x for x in p.w if x[0] == 's'}
        if c.kind == 'mfma' and pw_v & c.r: n = max(n, 2)
        if p.kind == 'trans' and cv and c.kind != 'trans' and pw_v & c.r: n = max(n, 1)
        if p.kind == 'trans' and cmem and pw_v & c.r: n = max(n, 1)
        if cv and c.dpp and pw_v & c.r: n = max(n, 2)
        if c.kind == 'rdlane' and pw_v & c.r: n = max(n, 1)
        if pw_s:
            if cv and pw_s & c.r: n = max(n, 4 if c.kind == 'rdlane' else 2)
            if c.kind in ('vload', 'vstore', 'dma') and pw_s & c.r: n = max(n, 5)
            if c.kind == 'salu' and pw_s & c.r: n = max(n, 2)
    if p.kind == 'mfma':
        big = 12 if p.passes == 8 else 8
        if c.kind == 'mfma':
            if p.w & c.ab: n = max(n, big)
            if p.w & c.c:
                if not (p.w == c.c and p.passes == c.passes): n = max(n, 10 if p.passes == 8 else 6)
            elif p.w & c.w:
                n = max(n, big)
        elif cv or cmem:
            if p.w & (c.r | c.w): n = max(n, big)
        if cv and p.c & c.w: n = max(n, 7 if p.passes == 8 else 3)
    if p.kind == 'vstore' and p.data:
        if p.data & c.w: n = max(n, 2)
    if p.kind == 'salu' and ('s', 124) in p.w and c.kind == 'dma': n = max(n, 1)
    return n


class Asm:
    def __init__(self):
        self.lines = []
        self.vm = []
        self.lg = []
        self.uid = 0

    def __call__(self, text):
        for ln in text.strip().split('\n'):
            ln = ln.strip()
            if ln: self.lines.append(ln)

    def label(self, name):
        self.lines.append(name + ':')

    def newlabel(self, base='L'):
        self.uid += 1
        return f'{base}_{self.uid}'

    def vmem(self, text, tag=None):
        self(text); self.vm.append(tag)

    def ds(self, text, tag=None):
        self(text); self.lg.append(tag)

    def _n_after(self, q, tag):
        idx = max((i for i, t in enumerate(q) if t == tag), default=None)
        if idx is None: return None
        return len(q) - 1 - idx

    def wait_vm(self, tag=None, text_only=False):
        if tag is None:
            n = 0
        else:
            n = self._n_after(self.vm, tag)
            if n is None: return None
        n = min(n, 63)
        self.vm = self.vm[len(self.vm) - n:] if n else []
        self(f's_waitcnt vmcnt({n})')
        return n

    def wait_lg(self, tag=None):
        if tag is None:
            n = 0
        else:
            n = self._n_after(self.lg, tag)
            if n is None: return None
        n = min(n, 15)
        self.lg = self.lg[len(self.lg) - n:] if n else []
        self(f's_waitcnt lgkmcnt({n})')
        return n

    def state(self):
        return (list(self.vm), list(self.lg))

    def set_state(self, st):
        self.vm = list(st[0]); self.lg = list(st[1])

    def padded(self):
        out = []
        hist = []
        nins = 0
        for ln in self.lines:
            ins = Inst(ln)
            if ins.kind in ('none',):
                out.append(ln); continue
            if ins.kind == 'label':
                out.append(ln); continue
            dist = 0; need = 0
            for p in reversed(hist):
                k = need_states(p, ins) - dist
                if k > need: need = k
                dist += p.states
                if dist >= 14: break
            if need > 0:
                nop = Inst(f's_nop {need - 1}')
                out.append(nop.text); hist.append(nop); nins += 1
            out.append(ln); hist.append(ins)
            if len(hist) > 32: hist = hist[-20:]
        self.nops_inserted = nins
        return out
```

```python
import sys, os
sys.path.insert(0, os.path.dirname(__file__))
from asmlib import Asm

NAME = 'parallel_sum__ssm_conv_s5__dense_activation_mish__prompt'
OPT = dict(a.split('=') for a in sys.argv[2:] if '=' in a)
STAMP = int(OPT.get('stamp', 0))

WS_STATS = 0x0
WS_AGG = 0x10000;  AGG_ROW = 704 * 16
WS_FA2 = 0x40000
WS_FP = 0x50000
WS_STAMP = 0x60000
WS_BASE = 0x100000
WS_A2 = 0x800000
WS_PART = 0x1400000
WS_END = 0x2C00000
OOB = 0x7FFF0000
SPIN_MAX = 40000

sW, sKQ, sR, sJJ, sU, sISS, sBLK, sN0 = 3, 4, 5, 6, 7, 8, 9, 10
sT0, sT1, sT2, sT3, sT4 = 11, 12, 13, 14, 15
P_X, P_LRE, P_LIM, P_BRE, P_BIM, P_CRE, P_CIM, P_LDT, P_DSK, P_BX, P_W1, P_B1, P_W2, P_OUT, P_DBG, P_WS = [16 + 2 * i for i in range(16)]
SRD_X, SRD_B1, SRD_W2, SRD_CRE, SRD_CIM, SRD_WS, SRD_OUT, SRD_BASE, SRD_SX, SRD_SY = 48, 52, 56, 60, 64, 68, 72, 76, 80, 84
sNON = 88
sSPIN, sSOB, sSOA, sWA, sWB1, sWB2 = 90, 91, 92, 93, 94, 95
sM0, sM1 = 96, 98
sROW0 = 100
sK3 = 101
sST = list(range(16, 28))
sPC = list(range(28, 34))
sMASK = list(range(34, 38))
sA2P = list(range(38, 42))
sFA2, sFP = 42, 43
sPART = 46
sT5 = 47

def srd(n): return f's[{n}:{n+3}]'
def vr(n, k=1): return f'v{n}' if k == 1 else f'v[{n}:{n+k-1}]'
def ar(n, k=1): return f'a{n}' if k == 1 else f'a[{n}:{n+k-1}]'
def sr(n, k=1): return f's{n}' if k == 1 else f's[{n}:{n+k-1}]'

ACC = 0
OWN = 96
vL, vLI, vH, vL16 = 144, 145, 146, 147
VA = [148, 149, 150, 151]
VB1 = list(range(152, 158))
VT2 = list(range(158, 164))
VN2 = list(range(164, 170))
VX2 = list(range(170, 176))
RA = [176, 177, 178, 179]
RB = list(range(180, 188))
LT2 = [188, 189]; LN2 = [190, 191, 192, 193]
CT2 = [194, 195]; CN2 = [196, 197, 198, 199]
SEL = 200
GR = 204
XC = 208
WC = 212
vB1 = list(range(226, 232))
vT = list(range(232, 256))
aB = 0
aA = 72
aCS = 84
aA2_M = 72
aA2_S = 48

SLOT1 = 40960
LOG2E = 0x3FB8AA3B

a = Asm()

def stamp(idx):
    if not STAMP: return
    a(f'''s_memrealtime s[{sM1}:{sM1+1}]
    s_waitcnt lgkmcnt(0)
    s_lshl_b32 s{sM0}, s2, 2
    s_add_u32 s{sM0}, s{sM0}, s{sW}
    s_lshl_b32 s{sM0}, s{sM0}, 7
    s_add_u32 s{sM0}, s{sM0}, {WS_STAMP + idx*4}
    v_mov_b32 v{vT[23]}, s{sM1}
    v_mov_b32 v{vT[22]}, 0''')
    a.lg = []
    a.vmem(f'buffer_store_dword v{vT[23]}, v{vT[22]}, {srd(SRD_WS)}, s{sM0} offen', 'stamp')

def mk_srd(d, p, nbytes, add=0):
    if add:
        a(f's_add_u32 s{d}, s{p}, {add}\ns_addc_u32 s{d+1}, s{p+1}, 0')
    else:
        a(f's_mov_b32 s{d}, s{p}\ns_mov_b32 s{d+1}, s{p+1}')
    a(f's_mov_b32 s{d+2}, {nbytes}\ns_mov_b32 s{d+3}, 0x20000')

def tau(dst, src, t):
    a(f'''v_bfe_u32 v{dst}, v{src}, 2, 1
    v_lshlrev_b32 v{dst}, 4, v{dst}
    v_and_b32 v{t}, 1, v{src}
    v_lshl_or_b32 v{dst}, v{t}, 3, v{dst}
    v_bfe_u32 v{t}, v{src}, 3, 2
    v_lshl_or_b32 v{dst}, v{t}, 1, v{dst}
    v_bfe_u32 v{t}, v{src}, 1, 1
    v_or_b32 v{dst}, v{dst}, v{t}''')

def spin_begin():
    a(f's_mov_b32 s{sSPIN}, 0')

def spin_retry(lbl_retry, lbl_ok):
    a(f'''s_cbranch_scc1 {lbl_ok}
    s_add_u32 s{sSPIN}, s{sSPIN}, 1
    s_cmp_lt_u32 s{sSPIN}, {SPIN_MAX}
    s_cbranch_scc0 {lbl_ok}
    s_sleep 1
    s_branch {lbl_retry}''')

def prologue():
    T = vT
    a(f'''s_cmp_ge_u32 s2, 256
    s_cbranch_scc1 L_end
    s_load_dwordx16 s[16:31], s[0:1], 0
    s_load_dwordx16 s[32:47], s[0:1], 64
    s_memrealtime s[{sNON}:{sNON+1}]
    v_lshrrev_b32 v{T[0]}, 6, v0
    v_and_b32 v{vL}, 63, v0
    v_readfirstlane_b32 s{sW}, v{T[0]}
    s_and_b32 s{sKQ}, s2, 3
    s_bfe_u32 s{sT0}, s2, 0x10002
    s_lshl_b32 s{sT0}, s{sT0}, 3
    s_lshr_b32 s{sT1}, s2, 5
    s_add_u32 s{sR}, s{sT0}, s{sT1}
    s_bfe_u32 s{sJJ}, s2, 0x20003
    s_lshl_b32 s{sU}, s{sKQ}, 2
    s_add_u32 s{sU}, s{sU}, s{sJJ}
    s_cmp_eq_u32 s{sKQ}, 3
    s_cselect_b32 s{sK3}, 1, 0
    s_sub_u32 s{sT0}, 2, s{sK3}
    s_cmp_lt_u32 s{sJJ}, s{sT0}
    s_cselect_b32 s{sISS}, 1, 0
    s_lshl_b32 s{sT1}, s{sR}, 7
    s_lshl_b32 s{sT2}, s{sW}, 5
    s_add_u32 s{sROW0}, s{sT1}, s{sT2}
    s_lshl_b32 s{sWA}, s{sW}, 12
    s_mul_i32 s{sWB1}, s{sW}, 6144
    s_lshl_b32 s{sN0}, s{sJJ}, 7
    s_cmp_eq_u32 s{sJJ}, 3
    s_cselect_b32 s{sN0}, 448, s{sN0}
    v_and_b32 v{vLI}, 31, v{vL}
    v_lshrrev_b32 v{vH}, 5, v{vL}
    v_lshlrev_b32 v{vL16}, 4, v{vL}''')
    a(f'''s_lshl_b32 s{sT1}, s{sKQ}, 1
    s_add_u32 s{sT1}, s{sT1}, s{sJJ}
    s_mul_i32 s{sT1}, s{sT1}, 96
    s_sub_u32 s{sT2}, s{sJJ}, s{sT0}
    s_cmp_eq_u32 s{sISS}, 1
    s_cselect_b32 s{sBLK}, s{sT1}, s{sT2}''')
    a(f'''v_lshrrev_b32 v{T[0]}, 3, v{vL}
    v_and_b32 v{T[1]}, 7, v{vL}
    v_lshrrev_b32 v{T[2]}, 1, v{T[0]}
    v_xor_b32 v{T[2]}, v{T[2]}, v{T[1]}
    v_lshlrev_b32 v{T[2]}, 4, v{T[2]}
    v_bfe_u32 v{T[3]}, v{T[0]}, 1, 1
    v_lshlrev_b32 v{T[3]}, 2, v{T[3]}
    v_xor_b32 v{T[3]}, v{T[3]}, v{T[1]}
    v_lshlrev_b32 v{T[3]}, 4, v{T[3]}''')
    tau(T[4], T[0], T[5])
    a(f'''v_add_u32 v{T[4]}, s{sROW0}, v{T[4]}
    v_mul_u32_u24 v{T[4]}, 1280, v{T[4]}
    v_add_u32 v{VA[0]}, v{T[4]}, v{T[2]}
    v_xor_b32 v{T[5]}, 64, v{T[2]}
    v_add_u32 v{T[6]}, v{T[4]}, v{T[5]}
    v_add_u32 v{VA[1]}, 2560, v{T[6]}
    v_add_u32 v{VA[2]}, 5120, v{VA[0]}
    v_add_u32 v{VA[3]}, 7680, v{T[6]}''')
    a(f'''v_mul_u32_u24 v{T[8]}, 1280, v{T[0]}
    v_add_u32 v{T[6]}, v{T[8]}, v{T[2]}
    v_add_u32 v{T[7]}, v{T[8]}, v{T[5]}
    v_add_u32 v{T[8]}, v{T[8]}, v{T[3]}
    v_mul_u32_u24 v{T[9]}, 3456, v{T[0]}
    v_add_u32 v{T[9]}, v{T[9]}, v{T[3]}''')
    a(f'''s_lshl_b32 s{sT1}, s{sR}, 7
    s_lshl_b32 s{sT2}, s{sU}, 3
    s_add_u32 s{sT1}, s{sT1}, s{sT2}
    s_lshl_b32 s{sT2}, s{sW}, 1
    s_add_u32 s{sT1}, s{sT1}, s{sT2}
    v_add_u32 v{T[12]}, s{sT1}, v{vH}
    v_mul_u32_u24 v{T[10]}, 1280, v{T[12]}
    v_lshlrev_b32 v{T[11]}, 3, v{vLI}
    v_add_u32 v{T[10]}, v{T[10]}, v{T[11]}''')
    a('s_waitcnt lgkmcnt(0)')
    mk_srd(SRD_X, P_X, 2048 * 1280)
    mk_srd(SRD_WS, P_WS, WS_END)
    a(f'''s_or_b32 s{sT1}, s2, s{sW}
    s_cmp_lg_u32 s{sT1}, 0
    s_cbranch_scc1 L_nononce
    s_or_b32 s{sNON}, s{sNON}, 1
    v_mov_b32 v{T[14]}, s{sNON}
    v_mov_b32 v{T[15]}, s{sNON+1}
    v_mov_b32 v{T[13]}, 0
    global_store_dwordx2 v{T[13]}, v[{T[14]}:{T[15]}], s[{P_DBG}:{P_DBG+1}] sc0 sc1
    L_nononce:''')
    for m in range(5):
        a.vmem(f'buffer_load_dwordx2 v[{2*m}:{2*m+1}], v{T[10]}, {srd(SRD_X)}, 0 offen offset:{m*256}', 'xs')
    for m in range(5):
        a.vmem(f'global_load_dwordx2 v[{10+2*m}:{11+2*m}], v{T[11]}, s[{P_DSK}:{P_DSK+1}] offset:{m*256}', 'xs')
    stamp(0)

def setup_common_late():
    mk_srd(SRD_W2, P_W2, 1728 * 1280)
    mk_srd(SRD_CRE, P_CRE, 640 * 1280)
    mk_srd(SRD_CIM, P_CIM, 640 * 1280)
    mk_srd(SRD_OUT, P_OUT, 2048 * 2560)
    mk_srd(SRD_BASE, P_WS, 2048 * 2560, add=WS_BASE)
    a(f's_cmp_eq_u32 s{sK3}, 1')
    for i in range(3):
        a(f's_cselect_b32 s{SRD_SX+i}, s{SRD_W2+i}, s{SRD_CRE+i}')
        a(f's_cselect_b32 s{SRD_SY+i}, s{SRD_CRE+i}, s{SRD_CIM+i}')
    a(f's_mov_b32 s{SRD_SX+3}, 0x20000\ns_mov_b32 s{SRD_SY+3}, 0x20000')
    a(f'''s_sub_u32 s{sT0}, 2, s{sK3}
    s_add_u32 s{sT4}, s{sK3}, 2
    s_cmp_eq_u32 s{sISS}, 1
    s_cselect_b32 s{sT1}, 0, s{sBLK}
    s_add_u32 s{sT2}, s{sT1}, 1
    s_cmp_eq_u32 s{sT2}, s{sT4}
    s_cselect_b32 s{sT2}, 0, s{sT2}
    s_add_u32 s{sT3}, s{sT2}, 1
    s_cmp_eq_u32 s{sT3}, 3
    s_cselect_b32 s{sT3}, 0, s{sT3}
    s_cmp_eq_u32 s{sK3}, 1
    s_cselect_b32 s{sT3}, s{sT3}, 2''')
    a(f'''s_add_u32 s{sT5}, s{sT1}, s{sT0}
    s_lshl_b32 s{sMASK[0]}, 1, s{sT5}
    s_add_u32 s{sT5}, s{sT2}, s{sT0}
    s_lshl_b32 s{sMASK[1]}, 1, s{sT5}
    s_add_u32 s{sT5}, s{sT3}, 1
    s_lshl_b32 s{sMASK[2]}, 1, s{sT5}
    s_cmp_eq_u32 s{sK3}, 1
    s_cselect_b32 s{sMASK[2]}, s{sMASK[2]}, 3
    s_cselect_b32 s{sMASK[3]}, 1, 3''')
    a(f'''s_lshl_b32 s{sT5}, s{sR}, 2
    s_add_u32 s{sT5}, s{sT5}, s{sW}
    s_lshl_b32 s{sT5}, s{sT5}, 2
    s_add_u32 s{sT5}, s{sT5}, s{sKQ}
    s_mul_i32 s{sT5}, s{sT5}, 49152
    s_add_u32 s{sT5}, s{sT5}, {WS_A2}''')
    for i, b in enumerate((sT1, sT2, sT3)):
        a(f's_mul_i32 s{sA2P[i]}, s{b}, 12288\ns_add_u32 s{sA2P[i]}, s{sA2P[i]}, s{sT5}')
    a(f's_add_u32 s{sA2P[3]}, s{sT5}, 36864')
    a(f's_lshl_b32 s{sT4}, s{sKQ}, 1')
    for i, b in enumerate((sT1, sT2, sT3)):
        a(f'''s_add_u32 s{sT5}, s{sT4}, s{b}
        s_mul_i32 s{sST[3*i]}, s{sT5}, {192*1280}
        s_add_u32 s{sST[3*i+1]}, s{sST[3*i]}, {64*1280}
        s_add_u32 s{sST[3*i+2]}, s{sST[3*i]}, {128*1280}''')
    a(f'''s_mul_i32 s{sST[9]}, s{sKQ}, 384
    s_add_u32 s{sST[10]}, s{sST[9]}, 128
    s_add_u32 s{sST[11]}, s{sST[9]}, 256
    s_cmp_eq_u32 s{sK3}, 1
    s_cselect_b32 s{sST[6]}, s{sST[6]}, s{sST[9]}
    s_cselect_b32 s{sST[7]}, s{sST[7]}, s{sST[10]}
    s_cselect_b32 s{sST[8]}, s{sST[8]}, s{sST[11]}
    s_cselect_b32 s{sST[10]}, s{sST[9]}, s{sST[10]}''')
    a(f'''s_lshl_b32 s{sT5}, s{sR}, 2
    s_add_u32 s{sT4}, s{sT5}, s{sKQ}
    s_lshl_b32 s{sT4}, s{sT4}, 2
    s_add_u32 s{sT4}, s{sT4}, s{sW}
    s_lshl_b32 s{sT4}, s{sT4}, 8
    s_add_u32 s{sFA2}, s{sT4}, {WS_FA2}
    s_add_u32 s{sT4}, s{sT5}, s{sJJ}
    s_lshl_b32 s{sT4}, s{sT4}, 2
    s_add_u32 s{sT4}, s{sT4}, s{sW}
    s_mul_i32 s{sPART}, s{sT4}, {4*24576}
    s_add_u32 s{sPART}, s{sPART}, {WS_PART}
    s_lshl_b32 s{sT4}, s{sT4}, 8
    s_add_u32 s{sFP}, s{sT4}, {WS_FP}''')

def final_piece_table():
    a(f'''s_cmp_lt_u32 s{sJJ}, 2
    s_cselect_b32 s{sT1}, 4, 6
    s_mul_i32 s{sT2}, s{sKQ}, s{sT1}''')
    for m in range(6):
        a(f'''s_add_u32 s{sT3}, s{sT2}, {m}
        s_and_b32 s{sT4}, s{sT3}, 3
        s_lshl_b32 s{sT4}, s{sT4}, 1
        s_add_u32 s{sT4}, s{sT4}, s{sROW0}
        s_mul_i32 s{sT4}, s{sT4}, 2560
        s_lshr_b32 s{sT3}, s{sT3}, 2
        s_lshl_b32 s{sT3}, s{sT3}, 5
        s_add_u32 s{sT3}, s{sT3}, s{sN0}
        s_lshl_b32 s{sT3}, s{sT3}, 2
        s_add_u32 s{sT4}, s{sT4}, s{sT3}
        s_cmp_gt_u32 s{sT1}, {m}
        s_cselect_b32 s{sPC[m]}, s{sT4}, {OOB}''')
    a(f's_lshl_b32 s{sT0}, s{sT2}, 10')

def g2_addr_setup(NP):
    T = vT
    for q in range(NP):
        a(f'''s_mul_i32 s{sT1}, s{sW}, {NP}
        s_add_u32 s{sT1}, s{sT1}, {q}
        s_and_b32 s{sT2}, s{sT1}, 7
        s_mul_i32 s{sT2}, s{sT2}, {8*1280}
        s_lshr_b32 s{sT3}, s{sT1}, 3
        s_lshl_b32 s{sT3}, s{sT3}, 7
        s_add_u32 s{sT2}, s{sT2}, s{sT3}
        s_lshl_b32 s{sT3}, s{sN0}, 1
        s_add_u32 s{sT2}, s{sT2}, s{sT3}
        v_add_u32 v{VT2[q]}, s{sT2}, v{T[8]}
        s_lshl_b32 s{sT1}, s{sT1}, 3
        s_add_u32 s{sT1}, s{sT1}, s{sN0}
        s_mul_i32 s{sT1}, s{sT1}, 1280
        v_add_u32 v{VN2[q]}, s{sT1}, v{T[6 + (q & 1)]}''')
    a(f's_cmp_eq_u32 s{sK3}, 1\ns_cselect_b64 vcc, -1, 0')
    for q in range(NP):
        a(f'v_cndmask_b32 v{VX2[q]}, v{VN2[q]}, v{VT2[q]}, vcc')
    a(f's_mul_i32 s{sWB2}, s{sW}, {NP*1024}')

def nk_lane(dst, kk_sgpr_or_int, t0):
    if isinstance(kk_sgpr_or_int, int):
        a(f'v_add_u32 v{dst}, {2*kk_sgpr_or_int}, v{vH}')
    else:
        a(f'v_add_u32 v{dst}, {kk_sgpr_or_int}, v{vH}')
    a(f'''v_bfe_u32 v{t0}, v{vLI}, 1, 3
    v_xor_b32 v{dst}, v{dst}, v{t0}
    v_lshlrev_b32 v{dst}, 4, v{dst}
    v_lshl_add_u32 v{dst}, v{vLI}, 7, v{dst}''')

def tr_lane(dst, permute, t0, t1):
    a(f'''v_bfe_u32 v{t0}, v{vL}, 2, 2
    v_lshl_add_u32 v{dst}, v{vH}, 3, v{t0}
    v_lshlrev_b32 v{dst}, 7, v{dst}
    v_lshrrev_b32 v{t0}, 1, v{t0}
    v_lshl_or_b32 v{dst}, v{t0}, 6, v{dst}
    v_bfe_u32 v{t0}, v{vL}, 4, 1
    v_lshl_or_b32 v{dst}, v{t0}, 5, v{dst}''')
    if permute:
        a(f'''v_and_b32 v{t0}, 1, v{vL}
        v_lshl_or_b32 v{dst}, v{t0}, 4, v{dst}
        v_bfe_u32 v{t0}, v{vL}, 1, 1
        v_lshl_or_b32 v{dst}, v{t0}, 3, v{dst}''')
    else:
        a(f'''v_and_b32 v{t0}, 3, v{vL}
        v_lshl_or_b32 v{dst}, v{t0}, 3, v{dst}''')

def read_setup(is_s):
    T = vT
    for p in range(4):
        a(f's_xor_b32 s{sT1}, s{sW}, {p}\ns_lshl_b32 s{sT2}, s{sT1}, 1')
        nk_lane(T[13], f's{sT2}', T[14])
        a(f'v_add_u32 v{RA[p]}, s{sWA}, v{T[13]}')
        if is_s:
            a(f'v_mov_b32 v{RB[p]}, v{T[13]}')
        else:
            if p == 0:
                tr_lane(T[15], True, T[14], T[16])
            a(f'''s_lshl_b32 s{sT2}, s{sT1}, 11
            v_add_u32 v{RB[2*p]}, s{sT2}, v{T[15]}
            v_xor_b32 v{RB[2*p+1]}, 64, v{RB[2*p]}''')
    for kk in range(4):
        nk_lane(LN2[kk], kk, T[14])
    tr_lane(LT2[0], False, T[14], T[16])
    a(f'v_xor_b32 v{LT2[1]}, 64, v{LT2[0]}')
    a(f'''v_bfe_u32 v{T[13]}, v{vL}, 2, 1
    v_bfe_u32 v{T[14]}, v{vL}, 4, 1
    v_cmp_eq_u32 vcc, v{T[13]}, v{T[14]}
    v_mov_b32 v{T[13]}, 0x3f803f80''')
    for i in range(4):
        a(f'v_cndmask_b32 v{SEL+i}, 0, v{T[13]}, vcc')

def g1_dma_items(s, is_s):
    slot = SLOT1 * (s % 4)
    items = []
    sob = s * 128 if is_s else s * 64 * 3456
    pre = [f's_mov_b32 s{sSOA}, {s*128}', f's_mov_b32 s{sSOB}, {sob}']
    for q in range(4):
        items.append((f's_add_u32 m0, s{sWA}, {slot + q*1024}', f'buffer_load_dwordx4 v{VA[q]}, {srd(SRD_X)}, s{sSOA} offen lds', ('g1', s)))
    for q in range(6):
        items.append((f's_add_u32 m0, s{sWB1}, {slot + 16384 + q*1024}', f'buffer_load_dwordx4 v{VB1[q]}, {srd(SRD_B1)}, s{sSOB} offen lds', ('g1', s)))
    return pre, items

def g2_dma_items(st, NP, slots):
    slot = slots[st % len(slots)]
    if st < 6: V, S = VT2, SRD_W2
    elif st < 9: V, S = VX2, SRD_SX
    elif st == 9: V, S = VN2, SRD_SY
    else: V, S = VN2, SRD_CIM
    items = []
    for q in range(NP):
        items.append((f's_add_u32 m0, s{sWB2}, {slot + q*1024}', f'buffer_load_dwordx4 v{V[q]}, {srd(S)}, s{sST[st]} offen lds', ('g2', st)))
    return [], items

def emit_dma_now(pre, items):
    for p in pre: a(p)
    for m0, ld, tag in items:
        a(m0); a.vmem(ld, tag)

def reduce32(v, t):
    for mod in ('quad_perm:[1,0,3,2]', 'quad_perm:[2,3,0,1]', 'row_half_mirror', 'row_mirror'):
        a(f'v_add_f32_dpp v{v}, v{v}, v{v} {mod} row_mask:0xf bank_mask:0xf')
    a.ds(f'ds_swizzle_b32 v{t}, v{v} offset:0x401F', 'sw')
    a.wait_lg()
    a(f'v_add_f32 v{v}, v{v}, v{t}')

def rbf(dst, src):
    a(f'v_cvt_pk_bf16_f32 v{dst}, v{src}, v{src}\nv_and_b32 v{dst}, 0xffff0000, v{dst}')

def stats_and_base():
    T = vT
    X = 20
    D = 40
    E = 60
    a.wait_vm('xs')
    for i in range(10):
        a(f'v_lshlrev_b32 v{X+2*i}, 16, v{i}\nv_and_b32 v{X+2*i+1}, 0xffff0000, v{i}')
    a(f'v_pk_add_f32 v[80:81], v[{X}:{X+1}], v[{X+2}:{X+3}]')
    for i in range(2, 10):
        a(f'v_pk_add_f32 v[80:81], v[80:81], v[{X+2*i}:{X+2*i+1}]')
    a('v_add_f32 v80, v80, v81')
    reduce32(80, 81)
    a(f'v_mul_f32 v80, {hexf(1.0/640)}, v80')
    for i in range(10):
        a(f'v_pk_add_f32 v[{E+2*i}:{E+2*i+1}], v[{X+2*i}:{X+2*i+1}], v[80:81] op_sel_hi:[1,0] neg_lo:[0,1] neg_hi:[0,1]')
    a(f'v_pk_mul_f32 v[82:83], v[{E}:{E+1}], v[{E}:{E+1}]')
    for i in range(1, 10):
        a(f'v_pk_fma_f32 v[82:83], v[{E+2*i}:{E+2*i+1}], v[{E+2*i}:{E+2*i+1}], v[82:83]')
    a('v_add_f32 v82, v82, v83')
    for i in range(10):
        a(f'v_lshlrev_b32 v{D+2*i}, 16, v{10+i}\nv_and_b32 v{D+2*i+1}, 0xffff0000, v{10+i}')
    reduce32(82, 83)
    a(f'v_mul_f32 v82, {hexf(1.0/640)}, v82')
    rbf(82, 82)
    a(f'v_add_f32 v82, {hexf(1e-5)}, v82')
    rbf(82, 82)
    a('v_sqrt_f32 v82, v82')
    rbf(GR + 1, 82)
    rbf(GR, 80)
    a(f'v_rcp_f32 v84, v{GR+1}\nv_mov_b32 v80, v{GR}')
    for i in range(10):
        a(f'v_pk_add_f32 v[{E+2*i}:{E+2*i+1}], v[{X+2*i}:{X+2*i+1}], v[80:81] op_sel_hi:[1,0] neg_lo:[0,1] neg_hi:[0,1]')
        a(f'v_pk_mul_f32 v[{E+2*i}:{E+2*i+1}], v[{E+2*i}:{E+2*i+1}], v[84:85] op_sel_hi:[1,0]')
        a(f'v_pk_fma_f32 v[{E+2*i}:{E+2*i+1}], v[{E+2*i}:{E+2*i+1}], v[{D+2*i}:{D+2*i+1}], v[{X+2*i}:{X+2*i+1}]')
    a(f'v_mul_u32_u24 v86, 2560, v{T[12]}\nv_lshl_add_u32 v86, v{vLI}, 4, v86')
    for m in range(5):
        a.vmem(f'buffer_store_dwordx4 v[{E+4*m}:{E+4*m+3}], v86, {srd(SRD_BASE)}, 0 offen offset:{m*512} sc0 sc1', 'base')
    a(f'v_lshlrev_b32 v{XC+3}, 4, v{T[12]}')

import struct
def hexf(x): return '0x%08x' % struct.unpack('<I', struct.pack('<f', x))[0]

def get_nonce_issue():
    a(f'v_mov_b32 v{XC+2}, 0')
    a.vmem(f'global_load_dwordx2 v[{XC}:{XC+1}], v{XC+2}, s[{P_DBG}:{P_DBG+1}] sc0 sc1', 'nonce')

def get_nonce_check():
    ok, retry = a.newlabel('L_nok'), a.newlabel('L_nrt')
    a.wait_vm('nonce')
    spin_begin()
    a(f's_branch {retry}_c')
    a.label(retry)
    a(f'global_load_dwordx2 v[{XC}:{XC+1}], v{XC+2}, s[{P_DBG}:{P_DBG+1}] sc0 sc1\ns_waitcnt vmcnt(0)')
    a.label(retry + '_c')
    a(f'''v_readfirstlane_b32 s{sNON}, v{XC}
    v_readfirstlane_b32 s{sNON+1}, v{XC+1}
    s_cmp_lg_u32 s{sNON}, 0''')
    spin_retry(retry, ok)
    a.label(ok)

def publish_stats():
    a(f'''v_mov_b32 v{GR+2}, s{sNON}
    v_mov_b32 v{GR+3}, s{sNON+1}
    s_mov_b32 exec_lo, 1
    s_mov_b32 exec_hi, 1''')
    a.vmem(f'buffer_store_dwordx4 v[{GR}:{GR+3}], v{XC+3}, {srd(SRD_WS)}, 0 offen sc0 sc1', 'pub')
    a('s_mov_b64 exec, -1\ns_nop 1')

def stats_load_issue():
    T = vT
    tau(XC + 3, vLI, XC + 2)
    a(f'v_add_u32 v{XC+3}, s{sROW0}, v{XC+3}\nv_lshlrev_b32 v{XC+3}, 4, v{XC+3}')
    a.vmem(f'buffer_load_dwordx4 v[{GR}:{GR+3}], v{XC+3}, {srd(SRD_WS)}, 0 offen sc0 sc1', 'gr')

def stats_check():
    ok, retry = a.newlabel('L_sok'), a.newlabel('L_srt')
    a.wait_vm('gr')
    spin_begin()
    a(f's_branch {retry}_c')
    a.label(retry)
    a(f'buffer_load_dwordx4 v[{GR}:{GR+3}], v{XC+3}, {srd(SRD_WS)}, 0 offen sc0 sc1\ns_waitcnt vmcnt(0)')
    a.label(retry + '_c')
    a(f'''v_cmp_eq_u64 vcc, s[{sNON}:{sNON+1}], v[{GR+2}:{GR+3}]
    s_cmp_eq_u64 vcc, -1''')
    spin_retry(retry, ok)
    a.label(ok)

class Pipe:
    def __init__(self):
        self.dmaq = []
    def push_dma(self, pre, items):
        for p in pre: self.dmaq.append((p, None))
        for m0, ld, tag in items:
            self.dmaq.append((m0, None)); self.dmaq.append((ld, tag))
    def pop_dma(self, n):
        while n > 0 and self.dmaq:
            t, tag = self.dmaq.pop(0)
            if tag is None: a(t)
            else: a.vmem(t, tag)
            n -= 1
    def flush(self):
        self.pop_dma(10 ** 6)

def emit_reads(lst, tag):
    for kind, t in lst:
        if kind == 'ds': a.ds(t, tag)
        else: a(t)

def run_steps(pipe, n0, n1, nlast, reads, mfmas, at_barrier, hooks, bar_after, tagp):
    for n in range(n0, n1):
        s, p = divmod(n, 4)
        if n in hooks: hooks[n]()
        a.wait_lg((tagp, n))
        ms = mfmas(n)
        rd = reads(n + 2) if n + 2 < nlast else []
        ngaps = len(ms)
        first = bar_after if p == 2 else 0
        per = -(-len(rd) // max(1, ngaps - first))
        for i, m in enumerate(ms):
            if p == 2 and i == bar_after:
                a.wait_lg()
                at_barrier(s)
            a(m)
            if i >= first or p != 2:
                emit_reads(rd[:per], (tagp, n + 2)); rd = rd[per:]
            if not (p == 2 and i >= first):
                pipe.pop_dma(2)
        assert not rd

def gemm1(is_s, pipe, g2_after):
    TP = {0: (0, 1), 1: (2,), 2: (3, 4), 3: (5,)}
    def reads(n):
        s, p = divmod(n, 4); b = n % 3
        delta = SLOT1 if s % 4 != 3 else -3 * SLOT1
        out = [('ds', f'ds_read_b128 {ar(aA + 4*b, 4)}, v{RA[p]}')]
        for t in range(6):
            d = aB + 24 * b + 4 * t
            if is_s:
                out.append(('ds', f'ds_read_b128 {ar(d, 4)}, v{RB[p]} offset:{16384 + t*4096}'))
            else:
                for j in range(2):
                    out.append(('ds', f'ds_read_b64_tr_b16 {ar(d + 2*j, 2)}, v{RB[2*p + (t & 1)]} offset:{16384 + (t >> 1)*8192 + j*512}'))
        if s < 9:
            regs = [RA[p]] + ([RB[p]] if is_s else [RB[2*p], RB[2*p+1]])
            for r in regs:
                out.append(('v', f'v_add_u32 v{r}, {delta & 0xffffffff}, v{r}'))
        return out
    seen_cs = set()
    def mfmas(n):
        s, p = divmod(n, 4); b = n % 3
        out = []
        for t in range(6):
            A_, B_ = ar(aA + 4*b, 4), ar(aB + 24*b + 4*t, 4)
            c = vr(ACC + 16*t, 16) if n > 0 else '0'
            x, y = (A_, B_) if is_s else (B_, A_)
            out.append(f'v_mfma_f32_32x32x16_bf16 {vr(ACC + 16*t, 16)}, {x}, {y}, {c}')
            if t in TP[p]:
                c = ar(aCS + 4*t, 4) if t in seen_cs else '0'
                seen_cs.add(t)
                out.append(f'v_mfma_f32_16x16x32_bf16 {ar(aCS + 4*t, 4)}, {vr(SEL, 4)}, {B_}, {c}')
        return out
    def at_barrier(s):
        pipe.flush()
        if s < 9: a.wait_vm(('g1', s + 1))
        a('s_barrier')
        if s + 4 < 10: pipe.push_dma(*g1_dma_items(s + 4, is_s))
        for st in g2_after.get(s, []):
            pipe.push_dma(*st)
    def h_pub():
        a.wait_vm('base')
        get_nonce_check()
        publish_stats()
    hooks = {16: h_pub, 32: stats_load_issue}
    a.wait_vm(('g1', 0))
    a('s_barrier')
    stamp(1)
    emit_reads(reads(0), ('k1', 0)); emit_reads(reads(1), ('k1', 1))
    run_steps(pipe, 0, 40, 40, reads, mfmas, at_barrier, hooks, 3, 'k1')
    pipe.flush()

def correction(is_s, cs_lds):
    T = vT
    a(f'v_lshlrev_b32 v{T[0]}, 4, v{vLI}\ns_lshl_b32 s{sT1}, s{sW}, 2\ns_add_u32 s{sT1}, s{sT1}, {cs_lds}\nv_add_u32 v{T[1]}, s{sT1}, v{T[0]}')
    a(f'v_add_u32 v{T[0]}, {cs_lds}, v{T[0]}')
    for t in range(6):
        a.ds(f'ds_write_b32 v{T[1]}, a{aCS + 4*t} offset:{t*512}', 'cs')
    stats_check()
    a.wait_lg()
    a('s_barrier')
    Q = OWN
    for t in range(6):
        a.ds(f'ds_read_b128 {vr(Q + 4*t, 4)}, v{T[0]} offset:{t*512}', ('csr', t))
    a(f'''v_cmp_eq_u32 vcc, 0, v{vH}
    v_xor_b32 v{T[2]}, 0x80000000, v{GR}
    v_lshrrev_b32 v{T[3]}, 16, v{T[2]}
    v_or_b32 v{T[4]}, v{T[3]}, v{T[2]}
    v_or_b32 v{T[5]}, v{T[3]}, v{GR+1}
    v_cndmask_b32 v{XC}, 0, v{T[4]}, vcc
    v_cndmask_b32 v{XC+1}, 0, v{T[5]}, vcc
    v_mov_b32 v{XC+2}, 0
    v_mov_b32 v{XC+3}, 0
    v_mov_b32 v{WC+12}, 0
    v_mov_b32 v{WC+13}, 0
    v_rcp_f32 v{GR+2}, v{GR+1}''')
    for t in range(6):
        q = Q + 4 * t
        a.wait_lg(('csr', t))
        a(f'''v_add_f32 v{q}, v{q}, v{q+1}
        v_add_f32 v{q+2}, v{q+2}, v{q+3}
        v_add_f32 v{q}, v{q}, v{q+2}
        v_and_b32 v{q+1}, 0xffff0000, v{q}
        v_sub_f32 v{q+2}, v{q}, v{q+1}
        v_and_b32 v{q+3}, 0xffff0000, v{q+2}
        v_sub_f32 v{q+2}, v{q+2}, v{q+3}
        v_lshrrev_b32 v{q+1}, 16, v{q+1}
        v_or_b32 v{WC+2*t}, v{q+1}, v{q+3}
        v_lshrrev_b32 v{WC+2*t+1}, 16, v{q+2}''')
        if not is_s:
            a(f'v_lshl_or_b32 v{WC+2*t+1}, v{vB1[t]}, 16, v{WC+2*t+1}')
    for t in range(6):
        x, y = (vr(XC, 4), vr(WC + 2*t, 4)) if is_s else (vr(WC + 2*t, 4), vr(XC, 4))
        a(f'v_mfma_f32_32x32x16_bf16 {vr(ACC + 16*t, 16)}, {x}, {y}, {vr(ACC + 16*t, 16)}')

def set_flag(sgroup, sidx):
    T = vT
    a.wait_vm()
    a(f'''s_lshl_b32 s{sT1}, s{sidx}, 6
    s_add_u32 s{sT1}, s{sT1}, s{sgroup}
    v_mov_b32 v{T[0]}, s{sNON}
    v_mov_b32 v{T[1]}, s{sNON+1}
    v_mov_b32 v{T[2]}, 0
    s_mov_b64 exec, 1''')
    a.vmem(f'buffer_store_dwordx2 v[{T[0]}:{T[1]}], v{T[2]}, {srd(SRD_WS)}, s{sT1} offen sc0 sc1', 'flag')
    a('s_mov_b64 exec, -1')

vFL, vFA = GR, XC
def flag_issue(sgroup):
    a.vmem(f'buffer_load_dwordx2 v[{vFL}:{vFL+1}], v{vFA}, {srd(SRD_WS)}, s{sgroup} offen sc0 sc1', 'fl')

def flag_check(sgroup, mask):
    ok, retry = a.newlabel('L_fok'), a.newlabel('L_frt')
    a.wait_vm('fl')
    spin_begin()
    a(f's_branch {retry}_c')
    a.label(retry)
    a(f'buffer_load_dwordx2 v[{vFL}:{vFL+1}], v{vFA}, {srd(SRD_WS)}, s{sgroup} offen sc0 sc1\ns_waitcnt vmcnt(0)')
    a.label(retry + '_c')
    a(f'''v_cmp_eq_u64 vcc, s[{sNON}:{sNON+1}], v[{vFL}:{vFL+1}]
    s_and_b32 s{sT1}, vcc_lo, {mask}
    s_cmp_eq_u32 s{sT1}, {mask}''')
    spin_retry(retry, ok)
    a.label(ok)

def a2_loads(pos, areg):
    for f in range(12):
        if f % 4 == 0:
            a(f's_add_u32 s{sT2}, s{sA2P[pos]}, {f*1024}')
        a.vmem(f'buffer_load_dwordx4 {ar(areg + 4*f, 4)}, v{vL16}, {srd(SRD_WS)}, s{sT2} offen offset:{(f % 4)*1024} sc0 sc1', ('a2', pos, f // 4))

BASEV = 148
def gemm2(is_s, pipe, slots, pfx):
    NT = 4 if is_s else 6
    NP = NT
    def afrag(n):
        pos, f = divmod(n, 12)
        if is_s: return ar(aA2_S + 48*pos + 4*f, 4)
        if pos == 0: return vr(OWN + 4*f, 4)
        return ar(aA2_M + 48*(pos - 1) + 4*f, 4)
    def mk_reads(types):
        def reads(n):
            s, p = divmod(n, 4); b = n % 3
            slot = slots[s % len(slots)]
            out = []
            if types[s] == 't':
                if p == 0:
                    for e in range(2): out.append(('v', f'v_add_u32 v{CT2[e]}, {slot}, v{LT2[e]}'))
                for t in range(NT):
                    d = aB + 4*NT*b + 4*t
                    for j in range(2):
                        out.append(('ds', f'ds_read_b64_tr_b16 {ar(d + 2*j, 2)}, v{CT2[t & 1]} offset:{(t >> 1)*8192 + p*2048 + j*512}'))
            else:
                out.append(('v', f'v_add_u32 v{CN2[p]}, {slot}, v{LN2[p]}'))
                for t in range(NT):
                    d = aB + 4*NT*b + 4*t
                    out.append(('ds', f'ds_read_b128 {ar(d, 4)}, v{CN2[p]} offset:{t*4096}'))
            return out
        return reads
    def mfmas(n):
        b = n % 3
        out = []
        for t in range(NT):
            c = vr(ACC + 16*t, 16) if n > 0 else '0'
            out.append(f'v_mfma_f32_32x32x16_bf16 {vr(ACC + 16*t, 16)}, {afrag(n)}, {ar(aB + 4*NT*b + 4*t, 4)}, {c}')
        return out
    def mk_bar(nst):
        def at_barrier(s):
            pipe.flush()
            if s + 1 < nst:
                a.wait_vm(('g2', s + 1))
                a('s_barrier')
                if s + len(slots) < 12: pipe.push_dma(*g2_dma_items(s + len(slots), NP, slots))
        return at_barrier
    def areg(pos): return aA2_S + 48*pos if is_s else aA2_M + 48*(pos - 1)
    def h_issue(): flag_issue(sFA2)
    def h_get(pos):
        def f():
            flag_check(sFA2, f's{sMASK[pos]}')
            a2_loads(pos, areg(pos))
        return f
    def h_wait(pos, g):
        return lambda: a.wait_vm(('a2', pos, g))
    def chain(*fs):
        def f():
            for x in fs: x()
        return f
    hooks = {}
    def add(n, f): hooks[n] = chain(hooks[n], f) if n in hooks else f
    add(0, h_issue); add(4, h_get(1))
    add(12, h_issue); add(16, h_get(2))
    add(24, h_issue); add(28, h_get(3))
    for pos in range(0 if is_s else 1, 4):
        for g in range(3): add(12*pos + 4*g, h_wait(pos, g))
    def base_loads():
        final_piece_table()
        T = vT
        a(f'''v_mul_u32_u24 v{T[20]}, {16*2560}, v{vH}
        v_lshl_add_u32 v{T[20]}, v{vLI}, 2, v{T[20]}
        v_add_u32 v{T[21]}, 20480, v{T[20]}''')
        for m in range(NT):
            for rr in range(4):
                a.vmem(f'buffer_load_dword v{BASEV + 4*m + rr}, v{T[20 + (rr & 1)]}, {srd(SRD_BASE)}, s{sPC[m]} offen offset:{(rr >> 1)*2560} sc0 sc1', 'bl')
    add(34, base_loads)
    bar_after = 3 if NT == 6 else 2
    a(f'v_and_b32 v{vFA}, 3, v{vL}\nv_lshlrev_b32 v{vFA}, 6, v{vFA}')
    if is_s:
        flag_issue(sFA2); h_get(0)()
    tA = ['t'] * 6 + ['n'] * 6
    tB = ['t'] * 9 + ['n'] * 2
    a.wait_vm(('g2', 0))
    a.wait_lg()
    a('s_barrier')
    stamp(4)
    rd = mk_reads(tA)
    emit_reads(rd(0), ('k2', 0)); emit_reads(rd(1), ('k2', 1))
    run_steps(pipe, 0, 22, 48, rd, mfmas, mk_bar(12), hooks, bar_after, 'k2')
    pipe.flush()
    st = a.state()
    a(f's_cmp_eq_u32 s{sK3}, 1\ns_cbranch_scc1 {pfx}_k3')
    run_steps(pipe, 22, 48, 48, rd, mfmas, mk_bar(12), hooks, bar_after, 'k2')
    pipe.flush()
    a(f's_branch {pfx}_fin')
    a.label(f'{pfx}_k3')
    a.set_state(st)
    run_steps(pipe, 22, 44, 44, mk_reads(tB), mfmas, mk_bar(11), hooks, bar_after, 'k2')
    pipe.flush()
    a.label(f'{pfx}_fin')
    a('s_nop 7\ns_nop 7')
    stamp(5)
    T = vT
    a(f's_mul_i32 s{sT3}, s{sKQ}, 24576\ns_add_u32 s{sT3}, s{sT3}, s{sPART}')
    for t in range(NT):
        for g in range(4):
            a.vmem(f'buffer_store_dwordx4 {vr(ACC + 16*t + 4*g, 4)}, v{vL16}, {srd(SRD_WS)}, s{sT3} offen offset:{g*1024} sc0 sc1', 'ps')
        a(f's_add_u32 s{sT3}, s{sT3}, 4096')
    set_flag(sFP, sKQ)
    flag_issue(sFP)
    flag_check(sFP, '15')
    stamp(6)
    a(f's_add_u32 s{sT3}, s{sPART}, s{sT0}')
    for m in range(NT):
        for k in range(4):
            a(f's_add_u32 s{sT4}, s{sT3}, {k*24576 + (m // 4)*4096}')
            a.vmem(f'buffer_load_dwordx4 {vr(ACC + 16*m + 4*k, 4)}, v{vL16}, {srd(SRD_WS)}, s{sT4} offen offset:{(m % 4)*1024} sc0 sc1', ('pl', m))
    for m in range(NT):
        a.wait_vm(('pl', m))
        q = ACC + 16 * m
        for hh in range(2):
            a(f'''v_pk_add_f32 {vr(q + 2*hh, 2)}, {vr(q + 2*hh, 2)}, {vr(q + 4 + 2*hh, 2)}
            v_pk_add_f32 {vr(q + 8 + 2*hh, 2)}, {vr(q + 8 + 2*hh, 2)}, {vr(q + 12 + 2*hh, 2)}
            v_pk_add_f32 {vr(q + 2*hh, 2)}, {vr(q + 2*hh, 2)}, {vr(BASEV + 4*m + 2*hh, 2)}
            v_pk_add_f32 {vr(q + 2*hh, 2)}, {vr(q + 2*hh, 2)}, {vr(q + 8 + 2*hh, 2)}''')
        for rr in range(4):
            a.vmem(f'buffer_store_dword v{q + rr}, v{T[20 + (rr & 1)]}, {srd(SRD_OUT)}, s{sPC[m]} offen offset:{(rr >> 1)*2560}', 'out')
    stamp(7)
    a('s_endpgm')

def prog_M():
    T = vT
    pipe = Pipe()
    mk_srd(SRD_B1, P_W1, 640 * 3456)
    a(f's_lshl_b32 s{sT4}, s{sKQ}, 1\ns_add_u32 s{sT4}, s{sT4}, s{sBLK}\ns_mul_i32 s{sT4}, s{sT4}, 384')
    for q in range(6):
        a(f'''s_mul_i32 s{sT1}, s{sW}, 6
        s_add_u32 s{sT1}, s{sT1}, {q}
        s_and_b32 s{sT2}, s{sT1}, 7
        s_mul_i32 s{sT2}, s{sT2}, {8*3456}
        s_lshr_b32 s{sT3}, s{sT1}, 3
        s_lshl_b32 s{sT3}, s{sT3}, 7
        s_add_u32 s{sT2}, s{sT2}, s{sT3}
        s_add_u32 s{sT2}, s{sT2}, s{sT4}
        v_add_u32 v{VB1[q]}, s{sT2}, v{T[9]}''')
    for s in range(4): emit_dma_now(*g1_dma_items(s, False))
    a(f'''v_and_b32 v{T[13]}, 0x13, v{vLI}
    v_bfe_u32 v{T[14]}, v{vLI}, 2, 1
    v_lshl_or_b32 v{T[13]}, v{T[14]}, 3, v{T[13]}
    v_bfe_u32 v{T[14]}, v{vLI}, 3, 1
    v_lshl_or_b32 v{T[13]}, v{T[14]}, 2, v{T[13]}
    v_lshlrev_b32 v{T[13]}, 1, v{T[13]}
    v_add_u32 v{T[13]}, s{sT4}, v{T[13]}''')
    for t in range(6):
        a.vmem(f'global_load_ushort v{vB1[t]}, v{T[13]}, s[{P_B1}:{P_B1+1}] offset:{t*64}', 'b1')
    get_nonce_issue()
    read_setup(False)
    setup_common_late()
    g2_addr_setup(6)
    stats_and_base()
    K = 1024
    slots = [80*K, 104*K, 128*K, 0, 24*K, 48*K]
    g2_after = {6: [g2_dma_items(0, 6, slots)], 7: [g2_dma_items(1, 6, slots), g2_dma_items(2, 6, slots)],
                8: [g2_dma_items(3, 6, slots)], 9: [g2_dma_items(4, 6, slots), g2_dma_items(5, 6, slots)]}
    gemm1(False, pipe, g2_after)
    stamp(2)
    correction(False, 152 * K)
    a(f'v_mov_b32 v{T[0]}, v{GR+2}\nv_mul_f32 v{T[1]}, {LOG2E}, v{GR+2}')
    a(f's_mov_b32 s{sT3}, s{sA2P[0]}')
    for t in range(6):
        base = ACC + 16 * t
        for half in range(2):
            prs = [base + 8*half + 2*i for i in range(4)]
            tt = [T[4 + 2*i] for i in range(4)]
            uu = [T[12 + 2*i] for i in range(4)]
            for x, y in zip(prs, tt):
                a(f'v_pk_mul_f32 {vr(y,2)}, {vr(x,2)}, {vr(T[0],2)} op_sel:[0,1] op_sel_hi:[1,1]')
            for y in tt:
                a(f'v_exp_f32 v{y}, v{y}\nv_exp_f32 v{y+1}, v{y+1}')
            for x in prs:
                a(f'v_pk_mul_f32 {vr(x,2)}, {vr(x,2)}, {vr(T[0],2)} op_sel_hi:[1,0]')
            for y, u in zip(tt, uu):
                a(f'v_pk_fma_f32 {vr(u,2)}, {vr(y,2)}, -0.5, -1.0 op_sel_hi:[1,0,0]')
            for y, u in zip(tt, uu):
                a(f'v_pk_fma_f32 {vr(u,2)}, {vr(y,2)}, {vr(u,2)}, -1.0 op_sel_hi:[1,1,0]')
            for u in uu:
                a(f'v_rcp_f32 v{u}, v{u}\nv_rcp_f32 v{u+1}, v{u+1}')
            for x, u in zip(prs, uu):
                a(f'v_pk_fma_f32 {vr(x,2)}, {vr(x,2)}, {vr(u,2)}, {vr(x,2)}')
            f = 2 * t + half
            for i, x in enumerate(prs):
                a(f'v_cvt_pk_bf16_f32 v{OWN + 4*f + i}, v{x}, v{x+1}')
            a.vmem(f'buffer_store_dwordx4 {vr(OWN + 4*f, 4)}, v{vL16}, {srd(SRD_WS)}, s{sT3} offen offset:{(f % 4)*1024} sc0 sc1', 'a2s')
            if f % 4 == 3: a(f's_add_u32 s{sT3}, s{sT3}, 4096')
    set_flag(sFA2, sJJ)
    stamp(3)
    gemm2(False, pipe, slots, 'LM')

def cmul(dr, di, ar_, ai, br, bi, cr=None, ci=None, t=None):
    tr = t if t is not None else dr
    if cr is None:
        a(f'v_mul_f32 v{tr}, v{ar_}, v{br}')
    else:
        a(f'v_fma_f32 v{tr}, v{ar_}, v{br}, v{cr}')
    a(f'v_fma_f32 v{tr}, -v{ai}, v{bi}, v{tr}')
    if ci is None:
        a(f'v_mul_f32 v{di}, v{ar_}, v{bi}')
    else:
        a(f'v_fma_f32 v{di}, v{ar_}, v{bi}, v{ci}')
    a(f'v_fma_f32 v{di}, v{ai}, v{br}, v{di}')
    if t is not None: a(f'v_mov_b32 v{dr}, v{t}')

def csq(dr, di, sr_, si, t):
    a(f'''v_mul_f32 v{t}, v{si}, v{si}
    v_add_f32 v{di}, v{si}, v{si}
    v_mul_f32 v{di}, v{di}, v{sr_}
    v_fma_f32 v{dr}, v{sr_}, v{sr_}, -v{t}''')

def prog_S():
    T = vT
    pipe = Pipe()
    K = 1024
    CA = [226, 228, 230]
    CA8 = [RB[4], RB[6], VX2[4]]
    CC = [VT2[4], VN2[4], T[16]]
    A16, A128, A1024 = T[18], T[10], T[12]
    a(f's_cmp_lt_u32 s{sW}, 2')
    a(f's_cselect_b32 s{SRD_B1}, s{P_BRE}, s{P_BIM}\ns_cselect_b32 s{SRD_B1+1}, s{P_BRE+1}, s{P_BIM+1}')
    a(f's_mov_b32 s{SRD_B1+2}, {640*1280}\ns_mov_b32 s{SRD_B1+3}, 0x20000')
    a(f's_and_b32 s{sT1}, s{sW}, 1\ns_mul_i32 s{sT1}, s{sT1}, 48\ns_add_u32 s{sT1}, s{sT1}, s{sBLK}\ns_mul_i32 s{sT1}, s{sT1}, 1280')
    for q in range(6):
        a(f's_add_u32 s{sT2}, s{sT1}, {q*8*1280}\nv_add_u32 v{VB1[q]}, s{sT2}, v{T[6 + (q & 1)]}')
    for s in range(4): emit_dma_now(*g1_dma_items(s, True))
    PR = OWN
    for j in range(3):
        a(f'''v_add_u32 v{T[13]}, s{sBLK}, v{vLI}
        v_add_u32 v{T[13]}, {32*j}, v{T[13]}
        v_min_u32 v{T[13]}, 639, v{T[13]}
        v_lshlrev_b32 v{T[13]}, 1, v{T[13]}''')
        for k, P in enumerate((P_LRE, P_LIM, P_LDT)):
            a.vmem(f'global_load_ushort v{PR + 4*j + k}, v{T[13]}, s[{P}:{P+1}]', 'prm')
    get_nonce_issue()
    read_setup(True)
    setup_common_late()
    g2_addr_setup(4)
    stats_and_base()
    a.wait_vm('prm')
    X = OWN + 16
    for j in range(3):
        lr, li_, ld = PR + 4*j, PR + 4*j + 1, PR + 4*j + 2
        ar_, ai = CA[j], CA[j] + 1
        a(f'''v_lshlrev_b32 v{lr}, 16, v{lr}
        v_lshlrev_b32 v{li_}, 16, v{li_}
        v_lshlrev_b32 v{ld}, 16, v{ld}
        v_mul_f32 v{ld}, {LOG2E}, v{ld}
        v_exp_f32 v{ld}, v{ld}''')
        rbf(ld, ld)
        a(f'''v_mul_f32 v{X}, v{ld}, v{lr}
        v_mul_f32 v{X+1}, v{ld}, v{li_}
        v_mul_f32 v{X}, {LOG2E}, v{X}
        v_exp_f32 v{X}, v{X}
        v_mul_f32 v{X+1}, 0.15915494, v{X+1}
        v_rndne_f32 v{X+2}, v{X+1}
        v_sub_f32 v{X+1}, v{X+1}, v{X+2}
        v_cos_f32 v{X+2}, v{X+1}
        v_sin_f32 v{X+3}, v{X+1}
        v_mul_f32 v{ar_}, v{X}, v{X+2}
        v_mul_f32 v{ai}, v{X}, v{X+3}
        v_mul_f32 v{X}, v{lr}, v{lr}
        v_fma_f32 v{X}, v{li_}, v{li_}, v{X}
        v_rcp_f32 v{X}, v{X}
        v_add_f32 v{X+1}, -1.0, v{ar_}
        v_add_f32 v{X}, v{X}, v{X}
        v_mul_f32 v{X+2}, v{X+1}, v{lr}
        v_fma_f32 v{X+2}, v{ai}, v{li_}, v{X+2}
        v_mul_f32 v{X+3}, v{ai}, v{lr}
        v_fma_f32 v{X+3}, -v{X+1}, v{li_}, v{X+3}
        v_mul_f32 v{CC[j]}, v{X+2}, v{X}
        v_mul_f32 v{CC[j]+1}, v{X+3}, v{X}''')
        csq(CA8[j], CA8[j]+1, ar_, ai, X)
        csq(CA8[j], CA8[j]+1, CA8[j], CA8[j]+1, X)
        csq(CA8[j], CA8[j]+1, CA8[j], CA8[j]+1, X)
    a(f'''s_cmp_eq_u32 s{sW}, 1
    s_cselect_b64 vcc, -1, 0
    v_cndmask_b32 v{A16}, v{CA8[0]}, v{CA8[1]}, vcc
    v_cndmask_b32 v{A16+1}, v{CA8[0]+1}, v{CA8[1]+1}, vcc
    s_cmp_eq_u32 s{sW}, 2
    s_cselect_b64 vcc, -1, 0
    v_cndmask_b32 v{A16}, v{A16}, v{CA8[2]}, vcc
    v_cndmask_b32 v{A16+1}, v{A16+1}, v{CA8[2]+1}, vcc''')
    csq(A16, A16+1, A16, A16+1, X)
    csq(A128, A128+1, A16, A16+1, X)
    for _ in range(2): csq(A128, A128+1, A128, A128+1, X)
    csq(A1024, A1024+1, A128, A128+1, X)
    for _ in range(2): csq(A1024, A1024+1, A1024, A1024+1, X)

    slots = [80*K, 96*K, 112*K, 128*K, 144*K, 0]
    G = lambda st: g2_dma_items(st, 4, slots)
    g2_after = {6: [G(0), G(1)], 7: [G(2), G(3), G(4)], 8: [G(5)]}
    gemm1(True, pipe, g2_after)
    stamp(2)
    L_CS, L_RS, L_AG, L_ST, L_TR = 16*K, 19*K, 20*K, 26*K, 32*K
    correction(True, L_CS)
    RS = WC - 4 + 0
    RS = 208
    a(f'''s_lshl_b32 s{sT1}, s{sW}, 7
    s_add_u32 s{sT1}, s{sT1}, {L_RS}
    v_lshl_add_u32 v{T[0]}, v{vLI}, 2, s{sT1}
    v_lshl_add_u32 v{T[1]}, v{vH}, 4, s{sT1}''')
    a.ds(f'ds_write_b32 v{T[0]}, v{GR+2}', 'rs')
    for g in range(4):
        a.ds(f'ds_read_b128 {vr(RS + 4*g, 4)}, v{T[1]} offset:{g*32}', 'rs')
    a.wait_lg()
    a('s_nop 7')
    for t in range(6):
        for i in range(8):
            x = ACC + 16*t + 2*i
            a(f'v_pk_mul_f32 {vr(x,2)}, {vr(x,2)}, {vr(RS + 2*i, 2)}')
    E = [OWN + 8*j for j in range(3)]
    RE_ = 'op_sel_hi:[0,1,1]'
    IM_ = 'op_sel:[1,0,0] op_sel_hi:[1,1,1]'
    NIM = IM_ + ' neg_lo:[1,0,0] neg_hi:[1,0,0]'
    for i in range(1, 8):
        for j in range(3):
            ur, ui = ACC + 16*j + 2*i, ACC + 16*(3 + j) + 2*i
            er, ei = (E[j], E[j] + 2) if i > 1 else (ACC + 16*j, ACC + 16*(3 + j))
            a(f'v_pk_fma_f32 {vr(E[j]+4,2)}, {vr(CA[j],2)}, {vr(ei,2)}, {vr(ur,2)} {NIM}')
            a(f'v_pk_fma_f32 {vr(E[j]+6,2)}, {vr(CA[j],2)}, {vr(er,2)}, {vr(ui,2)} {IM_}')
        for j in range(3):
            er, ei = (E[j], E[j] + 2) if i > 1 else (ACC + 16*j, ACC + 16*(3 + j))
            a(f'v_pk_fma_f32 {vr(E[j],2)}, {vr(CA[j],2)}, {vr(er,2)}, {vr(E[j]+4,2)} {RE_}')
            a(f'v_pk_fma_f32 {vr(E[j]+2,2)}, {vr(CA[j],2)}, {vr(ei,2)}, {vr(E[j]+6,2)} {RE_}')
    a(f'''s_mul_i32 s{sT1}, s{sW}, {2*768}
    v_mul_u32_u24 v{T[0]}, 768, v{vH}
    v_lshl_add_u32 v{T[0]}, v{vLI}, 3, v{T[0]}
    v_add_u32 v{T[0]}, s{sT1}, v{T[0]}''')
    for j in range(3):
        cmul(E[j]+4, E[j]+5, CA8[j], CA8[j]+1, E[j], E[j]+2, E[j]+1, E[j]+3)
        a.ds(f'ds_write_b64 v{T[0]}, {vr(E[j]+4, 2)} offset:{L_AG + j*256}', 'ag')
    a.wait_lg()
    a('s_barrier')
    SG = OWN + 24
    PG = 208
    st0 = a.state()
    a(f's_cmp_eq_u32 s{sW}, 3\ns_cbranch_scc1 LS_noduty')
    a(f's_lshl_b32 s{sT1}, s{sW}, 8\nv_lshl_add_u32 v{T[1]}, v{vLI}, 3, s{sT1}')
    for s in range(8):
        a.ds(f'ds_read_b64 {vr(SG + 2*s, 2)}, v{T[1]} offset:{L_AG + s*768}', 'sg')
    a(f'''s_lshl_b32 s{sT1}, s{sW}, 5
    s_add_u32 s{sT1}, s{sT1}, s{sBLK}
    v_add_u32 v{T[2]}, s{sT1}, v{vLI}
    v_lshlrev_b32 v{T[2]}, 4, v{T[2]}
    v_add_u32 v{T[2]}, {WS_AGG}, v{T[2]}
    s_sub_u32 s{sT2}, s{sR}, 1
    v_lshlrev_b32 v{T[3]}, 3, v{vH}
    v_sub_u32 v{T[3]}, s{sT2}, v{T[3]}''')
    a.wait_lg()
    P = OWN + 40
    a(f'v_mov_b32 v{P}, v{SG}\nv_mov_b32 v{P+1}, v{SG+1}')
    for s in range(1, 8):
        a(f'''v_fma_f32 v{P+2}, v{A16}, v{P}, v{SG+2*s}
        v_fma_f32 v{P+3}, v{A16}, v{P+1}, v{SG+2*s+1}
        v_fma_f32 v{P+2}, -v{A16+1}, v{P+1}, v{P+2}
        v_fma_f32 v{P+1}, v{A16+1}, v{P}, v{P+3}
        v_mov_b32 v{P}, v{P+2}''')
    a(f'''v_mov_b32 v{P+2}, s{sNON}
    v_mov_b32 v{P+3}, s{sNON+1}
    s_mul_i32 s{sT2}, s{sR}, {AGG_ROW}
    s_mov_b32 exec_hi, 0''')
    a.vmem(f'buffer_store_dwordx4 {vr(P, 4)}, v{T[2]}, {srd(SRD_WS)}, s{sT2} offen sc0 sc1', 'agg')
    a('s_mov_b64 exec, -1')
    PA = [208 + i for i in range(8)]
    for mm in range(8):
        a(f'''v_subrev_u32 v{PA[mm]}, {mm}, v{T[3]}
        v_max_i32 v{PA[mm]}, 0, v{PA[mm]}
        v_mul_u32_u24 v{PA[mm]}, {AGG_ROW}, v{PA[mm]}
        v_add_u32 v{PA[mm]}, v{PA[mm]}, v{T[2]}''')
    def poll_loads(track):
        for mm in range(8):
            t = f'buffer_load_dwordx4 {ar(4*mm, 4)}, v{PA[mm]}, {srd(SRD_WS)}, 0 offen sc0 sc1'
            if track: a.vmem(t, 'poll')
            else: a(t)
    poll_loads(True)
    a.label('LS_noduty')
    for j in range(3):
        for i in range(8):
            ur, ui = ACC + 16*j + 2*i, ACC + 16*(3 + j) + 2*i
            tq = T[4 + 2*(i % 3)]
            a(f'''v_pk_mul_f32 {vr(tq,2)}, {vr(CC[j],2)}, {vr(ui,2)} op_sel:[1,0] op_sel_hi:[1,1]
            v_pk_mul_f32 {vr(ui,2)}, {vr(CC[j],2)}, {vr(ui,2)} op_sel_hi:[0,1]
            v_pk_fma_f32 {vr(ui,2)}, {vr(CC[j],2)}, {vr(ur,2)}, {vr(ui,2)} {IM_}
            v_pk_fma_f32 {vr(ur,2)}, {vr(CC[j],2)}, {vr(ur,2)}, {vr(tq,2)} {RE_} neg_lo:[0,0,1] neg_hi:[0,0,1]''')
    a(f's_cmp_eq_u32 s{sW}, 3\ns_cbranch_scc1 LS_noduty2')
    ok, retry = 'LS_pok', 'LS_prt'
    a('s_waitcnt vmcnt(0)'); a.vm = []
    spin_begin()
    a(f's_branch {retry}_c')
    a.label(retry)
    poll_loads(False)
    a('s_waitcnt vmcnt(0)')
    a.label(retry + '_c')
    a(f's_mov_b64 s[{sM0}:{sM0+1}], -1')
    G0 = 216
    for mm in range(8):
        a(f'''v_accvgpr_read_b32 v{G0}, a{4*mm+2}
        v_accvgpr_read_b32 v{G0+1}, a{4*mm+3}
        v_cmp_gt_i32 s[{sM1}:{sM1+1}], {mm}, v{T[3]}
        v_cmp_eq_u64 vcc, s[{sNON}:{sNON+1}], v[{G0}:{G0+1}]
        s_or_b64 vcc, vcc, s[{sM1}:{sM1+1}]
        s_and_b64 s[{sM0}:{sM0+1}], s[{sM0}:{sM0+1}], vcc''')
    a(f's_cmp_eq_u64 s[{sM0}:{sM0+1}], -1')
    spin_retry(retry, ok)
    a.label(ok)
    a(f'v_mov_b32 v{P}, 0\nv_mov_b32 v{P+1}, 0')
    for mm in range(7, -1, -1):
        a(f'''v_accvgpr_read_b32 v{G0}, a{4*mm}
        v_accvgpr_read_b32 v{G0+1}, a{4*mm+1}
        v_cmp_le_i32 vcc, {mm}, v{T[3]}
        v_cndmask_b32 v{G0}, 0, v{G0}, vcc
        v_cndmask_b32 v{G0+1}, 0, v{G0+1}, vcc
        v_fma_f32 v{P+2}, v{A128}, v{P}, v{G0}
        v_fma_f32 v{P+3}, v{A128}, v{P+1}, v{G0+1}
        v_fma_f32 v{P+2}, -v{A128+1}, v{P+1}, v{P+2}
        v_fma_f32 v{P+1}, v{A128+1}, v{P}, v{P+3}
        v_mov_b32 v{P}, v{P+2}''')
    a(f'''v_mov_b32 v{G0}, v{P}
    v_mov_b32 v{G0+1}, v{P+1}
    v_permlane32_swap_b32 v{P}, v{G0}
    v_permlane32_swap_b32 v{P+1}, v{G0+1}''')
    a(f'''v_fma_f32 v{P}, v{A1024}, v{G0}, v{P}
    v_fma_f32 v{P+1}, v{A1024}, v{G0+1}, v{P+1}
    v_fma_f32 v{P}, -v{A1024+1}, v{G0+1}, v{P}
    v_fma_f32 v{P+1}, v{A1024+1}, v{G0}, v{P+1}''')
    cur, nxt = P, P + 2
    for s in range(8):
        a.ds(f'ds_write_b64 v{T[1]}, {vr(cur, 2)} offset:{L_ST + s*768}', 'st')
        if s < 7:
            a(f'''v_fma_f32 v{nxt}, v{A16}, v{cur}, v{SG+2*s}
            v_fma_f32 v{nxt+1}, v{A16}, v{cur+1}, v{SG+2*s+1}
            v_fma_f32 v{nxt}, -v{A16+1}, v{cur+1}, v{nxt}
            v_fma_f32 v{nxt+1}, v{A16+1}, v{cur}, v{nxt+1}''')
            cur, nxt = nxt, (P + 4 if nxt == P + 2 else (P if nxt == P + 4 else P + 2))
    a.label('LS_noduty2')
    a('s_waitcnt lgkmcnt(0)'); a.lg = []
    a('s_barrier')
    a.vm = list(st0[0])
    for j in range(3):
        a.ds(f'ds_read_b64 {vr(E[j]+4, 2)}, v{T[0]} offset:{L_ST + j*256}', 'sa')
    a.wait_lg()
    H = [SG + 4*j for j in range(3)]
    for j in range(3):
        sa = E[j] + 4
        cmul(E[j]+1, E[j]+3, CA8[j], CA8[j]+1, sa, sa+1, E[j], E[j]+2)
        a(f'v_mov_b32 v{E[j]}, v{sa}\nv_mov_b32 v{E[j]+2}, v{sa+1}')
        a(f'''v_pk_mul_f32 {vr(H[j],2)}, {vr(CC[j],2)}, {vr(E[j],2)} op_sel_hi:[0,1]
        v_pk_mul_f32 {vr(H[j]+2,2)}, {vr(CC[j],2)}, {vr(E[j]+2,2)} op_sel_hi:[0,1]
        v_pk_fma_f32 {vr(H[j],2)}, {vr(CC[j],2)}, {vr(E[j]+2,2)}, {vr(H[j],2)} {NIM}
        v_pk_fma_f32 {vr(H[j]+2,2)}, {vr(CC[j],2)}, {vr(E[j],2)}, {vr(H[j]+2,2)} {IM_}''')
    for i in range(8):
        for j in range(3):
            ur, ui = ACC + 16*j + 2*i, ACC + 16*(3 + j) + 2*i
            hr, hi = (H[j], H[j] + 2) if i == 0 else (ur - 2, ui - 2)
            a(f'v_pk_fma_f32 {vr(ur,2)}, {vr(CA[j],2)}, {vr(hi,2)}, {vr(ur,2)} {NIM}')
            a(f'v_pk_fma_f32 {vr(ui,2)}, {vr(CA[j],2)}, {vr(hr,2)}, {vr(ui,2)} {IM_}')
        for j in range(3):
            ur, ui = ACC + 16*j + 2*i, ACC + 16*(3 + j) + 2*i
            hr, hi = (H[j], H[j] + 2) if i == 0 else (ur - 2, ui - 2)
            a(f'v_pk_fma_f32 {vr(ur,2)}, {vr(CA[j],2)}, {vr(hr,2)}, {vr(ur,2)} {RE_}')
            a(f'v_pk_fma_f32 {vr(ui,2)}, {vr(CA[j],2)}, {vr(hi,2)}, {vr(ui,2)} {RE_}')
    a(f's_mul_i32 s{sT1}, s{sW}, 12288\ns_add_u32 s{sT1}, s{sT1}, {L_TR}')
    WA_ = [T[0], T[1], T[2], T[3]]
    a(f'v_bfe_u32 v{T[4]}, v{vLI}, 1, 3')
    for g in range(4):
        a(f'''v_add_u32 v{WA_[g]}, {2*g}, v{vH}
        v_xor_b32 v{WA_[g]}, v{WA_[g]}, v{T[4]}
        v_lshlrev_b32 v{WA_[g]}, 3, v{WA_[g]}
        v_lshl_add_u32 v{WA_[g]}, v{vLI}, 6, v{WA_[g]}
        v_add_u32 v{WA_[g]}, s{sT1}, v{WA_[g]}''')
    RD = [T[6], T[7]]
    for j in range(2):
        a(f'''v_bfe_u32 v{T[4]}, v{vL}, 2, 2
        v_lshl_add_u32 v{T[4]}, v{vH}, 3, v{T[4]}
        v_add_u32 v{T[4]}, {4*j}, v{T[4]}
        v_bfe_u32 v{T[5]}, v{vL}, 4, 1
        v_lshlrev_b32 v{T[5]}, 2, v{T[5]}
        v_and_b32 v{RD[j]}, 3, v{vL}
        v_or_b32 v{T[5]}, v{T[5]}, v{RD[j]}
        v_lshrrev_b32 v{RD[j]}, 1, v{T[4]}
        v_xor_b32 v{T[5]}, v{T[5]}, v{RD[j]}
        v_lshlrev_b32 v{T[5]}, 3, v{T[5]}
        v_lshl_add_u32 v{RD[j]}, v{T[4]}, 6, v{T[5]}
        v_add_u32 v{RD[j]}, s{sT1}, v{RD[j]}''')
    a(f's_sub_u32 s{sT4}, s{sA2P[3]}, 36864\ns_mul_i32 s{sT2}, s{sJJ}, 6144\ns_add_u32 s{sT2}, s{sT2}, s{sT4}')
    for t in range(6):
        full = ((24 if t < 3 else 36) + 2*(t % 3)) * 1024
        a(f's_add_u32 s{sPC[t]}, s{sT2}, {full}')
        if t % 3 == 2:
            a(f's_mov_b32 s{sT3}, {OOB}')
        else:
            a(f's_add_u32 s{sT3}, s{sT4}, {((36 if t < 3 else 40) + 2*(t % 3)) * 1024}')
        a(f's_cmp_eq_u32 s{sK3}, 1\ns_cselect_b32 s{sPC[t]}, s{sT3}, s{sPC[t]}')
    for t in range(6):
        ng = '-' if t >= 3 else ''
        for g in range(4):
            x = ACC + 16*t + 4*g
            a(f'v_cvt_pk_bf16_f32 v{x}, {ng}v{x}, {ng}v{x+1}\nv_cvt_pk_bf16_f32 v{x+1}, {ng}v{x+2}, {ng}v{x+3}')
            a.ds(f'ds_write_b64 v{WA_[g]}, {vr(x, 2)} offset:{t*2048}', 'tw')
    for t in range(6):
        for f in range(2):
            for j in range(2):
                a.ds(f'ds_read_b64_tr_b16 {vr(OWN + 8*t + 4*f + 2*j, 2)}, v{RD[j]} offset:{t*2048 + f*1024}', ('trd', t))
    for t in range(6):
        a.wait_lg(('trd', t))
        for f in range(2):
            a.vmem(f'buffer_store_dwordx4 {vr(OWN + 8*t + 4*f, 4)}, v{vL16}, {srd(SRD_WS)}, s{sPC[t]} offen offset:{f*1024} sc0 sc1', 'a2s')
    set_flag(sFA2, sJJ)
    stamp(3)
    gemm2(True, pipe, slots, 'LS')

prologue()
st = a.state()
a(f's_cmp_eq_u32 s{sISS}, 1\ns_cbranch_scc1 L_progS')
prog_M()
a.label('L_progS')
a.set_state(st)
prog_S()
a.label('L_end')
a('s_endpgm')

body = a.padded()
hdr = open(os.path.join(os.path.dirname(__file__), '..', 'cdna_kernels', NAME + '.s.ref')).read().split('; Override')[0]
out = hdr + f'''; generated by gen/gen.py (hand-written generator)
; @launch grid=(256,1,1) block=(256,1,1) lds=163840
.amdgcn_target "amdgcn-amd-amdhsa--gfx950"
.text
.globl {NAME}_kernel
.p2align 8
.type {NAME}_kernel,@function
{NAME}_kernel:
''' + '\n'.join(('' if l.endswith(':') else '    ') + l for l in body) + f'''
.section .rodata,"a"
.p2align 6
.amdhsa_kernel {NAME}_kernel
  .amdhsa_next_free_vgpr 512
  .amdhsa_next_free_sgpr 102
  .amdhsa_accum_offset 256
  .amdhsa_group_segment_fixed_size 0
  .amdhsa_kernarg_size 128
  .amdhsa_user_sgpr_count 2
  .amdhsa_user_sgpr_kernarg_segment_ptr 1
  .amdhsa_system_sgpr_workgroup_id_x 1
  .amdhsa_float_denorm_mode_32 3
.end_amdhsa_kernel
'''
open(sys.argv[1], 'w').write(out)
print('lines', len(body), 'nops inserted', a.nops_inserted)
```

```python
import re

TRANS = ('v_exp_f32', 'v_log_f32', 'v_rcp_f32', 'v_rsq_f32', 'v_sqrt_f32', 'v_sin_f32', 'v_cos_f32')

_reg_re = re.compile(r'(?<![\w.])(-?\|?)([vas])(\d+|\[\d+:\d+\])')


def regs_of(tok):
    out = []
    tok = tok.strip()
    if tok in ('vcc', 'vcc_lo', 'vcc_hi'):
        return [('s', 106), ('s', 107)]
    if tok == 'm0':
        return [('s', 124)]
    if tok in ('exec',):
        return [('s', 126), ('s', 127)]
    m = re.fullmatch(r'-?(?:abs\()?\|?([vas])(\d+)\|?\)?', tok)
    if m:
        return [(m.group(1), int(m.group(2)))]
    m = re.fullmatch(r'-?(?:abs\()?\|?([vas])\[(\d+):(\d+)\]\|?\)?', tok)
    if m:
        return [(m.group(1), i) for i in range(int(m.group(2)), int(m.group(3)) + 1)]
    return out


class Inst:
    __slots__ = ('text', 'op', 'kind', 'w', 'r', 'c', 'ab', 'dpp', 'states', 'data', 'passes')

    def __init__(self, text):
        self.text = text
        t = text.split(';')[0].strip()
        self.w = set(); self.r = set(); self.c = set(); self.ab = set(); self.data = set()
        self.dpp = False; self.states = 1; self.passes = 0
        if not t or t.endswith(':') or t.startswith('.'):
            self.op = ''; self.kind = 'label' if t.endswith(':') else 'none'; self.states = 0
            return
        parts = t.split(None, 1)
        op = parts[0]; self.op = op
        rest = parts[1] if len(parts) > 1 else ''
        ops = []; depth = 0; cur = ''
        for ch in rest:
            if ch in '[(': depth += 1
            if ch in '])': depth -= 1
            if ch == ',' and depth == 0:
                ops.append(cur.strip()); cur = ''
            else:
                cur += ch
        if cur.strip(): ops.append(cur.strip())
        mods = ''
        if ops:
            sp = ops[-1].split(None, 1)
            ops[-1] = sp[0]
            if len(sp) > 1: mods = sp[1]
        R = lambda toks: set(x for tk in toks for x in regs_of(tk))
        if op == 's_nop':
            self.kind = 'nop'; self.states = int(ops[0], 0) + 1
        elif op.startswith('v_mfma'):
            self.kind = 'mfma'
            self.passes = 8 if '32x32x16' in op else 4
            self.w = R(ops[:1]); self.ab = R(ops[1:3]); self.c = R(ops[3:4]); self.r = self.ab | self.c
        elif op.startswith('v_cmp'):
            self.kind = 'valu'; self.w = R(ops[:1]); self.r = R(ops[1:])
        elif op.startswith('v_permlane') and 'swap' in op:
            self.kind = 'valu'; self.w = R(ops); self.r = R(ops); self.dpp = True
        elif op.startswith('v_readfirstlane') or op.startswith('v_readlane'):
            self.kind = 'rdlane'; self.w = R(ops[:1]); self.r = R(ops[1:])
        elif op.startswith('v_'):
            self.kind = 'trans' if op.replace('_e32', '').replace('_e64', '') in TRANS else 'valu'
            self.w = R(ops[:1]); self.r = R(ops[1:])
            if op.startswith('v_fmac') or op.startswith('v_dot2c'): self.r |= self.w
            if '_co_' in op: self.w |= R(ops[1:2])
            if op.endswith('_dpp') or 'quad_perm' in mods or 'row_' in mods: self.dpp = True
            if op.startswith('v_cndmask') and len(ops) == 3: self.r |= {('s', 106), ('s', 107)}
        elif op.startswith('ds_read') or op.startswith('ds_swizzle') or op.startswith('ds_bpermute'):
            self.kind = 'dsr'; self.w = R(ops[:1]); self.r = R(ops[1:])
        elif op.startswith('ds_'):
            self.kind = 'dsw'; self.r = R(ops)
        elif op.startswith('buffer_load') or op.startswith('global_load'):
            if ' lds' in (' ' + mods) or 'load_lds' in op:
                self.kind = 'dma'; self.r = R(ops) | {('s', 124)}
            else:
                self.kind = 'vload'; self.w = R(ops[:1]); self.r = R(ops[1:])
        elif op.startswith('buffer_store') or op.startswith('global_store') or 'atomic' in op:
            self.kind = 'vstore'; self.r = R(ops)
            if op.endswith('x4') or op.endswith('x3'):
                self.data = R(ops[:1]) if op.startswith('buffer') else R(ops[1:2])
        elif op.startswith('s_'):
            self.kind = 'salu'
            if op.startswith('s_cmp') or op.startswith('s_cbranch') or op.startswith('s_branch') or op in ('s_waitcnt', 's_barrier', 's_endpgm', 's_sleep', 's_setprio', 's_bitcmp1_b32', 's_bitcmp0_b32'):
                self.r = R(ops)
            else:
                self.w = R(ops[:1]); self.r = R(ops[1:])
        else:
            self.kind = 'other'


def need_states(p, c):
    n = 0
    pv = p.kind in ('valu', 'trans', 'rdlane')
    cv = c.kind in ('valu', 'trans', 'rdlane')
    cmem = c.kind in ('dsr', 'dsw', 'vload', 'vstore', 'dma')
    if pv:
        pw_v = {x for x in p.w if x[0] != 's'}
        pw_s = {x for x in p.w if x[0] == 's'}
        if c.kind == 'mfma' and pw_v & c.r: n = max(n, 2)
        if p.kind == 'trans' and cv and c.kind != 'trans' and pw_v & c.r: n = max(n, 1)
        if p.kind == 'trans' and cmem and pw_v & c.r: n = max(n, 1)
        if cv and c.dpp and pw_v & c.r: n = max(n, 2)
        if c.kind == 'rdlane' and pw_v & c.r: n = max(n, 1)
        if pw_s:
            if cv and pw_s & c.r: n = max(n, 4 if c.kind == 'rdlane' else 2)
            if c.kind in ('vload', 'vstore', 'dma') and pw_s & c.r: n = max(n, 5)
            if c.kind == 'salu' and pw_s & c.r: n = max(n, 2)
    if p.kind == 'mfma':
        big = 12 if p.passes == 8 else 8
        if c.kind == 'mfma':
            if p.w & c.ab: n = max(n, big)
            if p.w & c.c:
                if not (p.w == c.c and p.passes == c.passes): n = max(n, 10 if p.passes == 8 else 6)
            elif p.w & c.w:
                n = max(n, big)
        elif cv or cmem:
            if p.w & (c.r | c.w): n = max(n, big)
        if cv and p.c & c.w: n = max(n, 7 if p.passes == 8 else 3)
    if p.kind == 'vstore' and p.data:
        if p.data & c.w: n = max(n, 2)
    if p.kind == 'salu' and ('s', 124) in p.w and c.kind == 'dma': n = max(n, 1)
    return n


class Asm:
    def __init__(self):
        self.lines = []
        self.vm = []
        self.lg = []
        self.uid = 0

    cap = None
    grp = None

    def _rec(self, fn, cost, text=''):
        item = (fn, cost, text)
        if self.grp is not None: self.grp.append(item)
        else: self.cap.append(item)

    def capture(self, fn):
        assert self.cap is None
        self.cap = []
        fn()
        out, self.cap = self.cap, None
        return out

    def group(self, fn):
        if self.cap is None or self.grp is not None:
            fn(); return
        self.grp = []
        fn()
        items, self.grp = self.grp, None
        def run():
            for f, c, t in items: f()
        self.cap.append((run, sum(c for f, c, t in items), ''))

    def __call__(self, text):
        for ln in text.strip().split('\n'):
            ln = ln.strip()
            if not ln: continue
            if self.cap is not None:
                op = ln.split()[0]
                self._rec((lambda l=ln: self.lines.append(l)), 2 if op in TRANS else 1, ln)
            else:
                self.lines.append(ln)

    def label(self, name):
        if self.cap is not None:
            self._rec((lambda: self.lines.append(name + ':')), 0, '')
        else:
            self.lines.append(name + ':')

    def newlabel(self, base='L'):
        self.uid += 1
        return f'{base}_{self.uid}'

    def vmem(self, text, tag=None):
        if self.cap is not None:
            self._rec((lambda: (self.lines.append(text), self.vm.append(tag))), 2, text); return
        self(text); self.vm.append(tag)

    def ds(self, text, tag=None):
        if self.cap is not None:
            self._rec((lambda: (self.lines.append(text), self.lg.append(tag))), 1, text); return
        self(text); self.lg.append(tag)

    def _n_after(self, q, tag):
        idx = max((i for i, t in enumerate(q) if t == tag), default=None)
        if idx is None: return None
        return len(q) - 1 - idx

    def wait_vm(self, tag=None, text_only=False):
        if self.cap is not None:
            self._rec((lambda: self.wait_vm(tag)), 1, ''); return
        if tag is None:
            n = 0
        else:
            n = self._n_after(self.vm, tag)
            if n is None: return None
        n = min(n, 63)
        self.vm = self.vm[len(self.vm) - n:] if n else []
        self(f's_waitcnt vmcnt({n})')
        return n

    def wait_lg(self, tag=None):
        if self.cap is not None:
            self._rec((lambda: self.wait_lg(tag)), 1, ''); return
        if tag is None:
            n = 0
        else:
            n = self._n_after(self.lg, tag)
            if n is None: return None
        n = min(n, 15)
        self.lg = self.lg[len(self.lg) - n:] if n else []
        self(f's_waitcnt lgkmcnt({n})')
        return n

    def state(self):
        return (list(self.vm), list(self.lg))

    def set_state(self, st):
        self.vm = list(st[0]); self.lg = list(st[1])

    def padded(self):
        out = []
        hist = []
        nins = 0
        for ln in self.lines:
            ins = Inst(ln)
            if ins.kind in ('none',):
                out.append(ln); continue
            if ins.kind == 'label':
                out.append(ln); continue
            dist = 0; need = 0
            for p in reversed(hist):
                k = need_states(p, ins) - dist
                if k > need: need = k
                dist += p.states
                if dist >= 14: break
            if need > 0:
                nop = Inst(f's_nop {need - 1}')
                out.append(nop.text); hist.append(nop); nins += 1
            out.append(ln); hist.append(ins)
            if len(hist) > 32: hist = hist[-20:]
        self.nops_inserted = nins
        return out


SCC_READERS = ('s_cselect', 's_cbranch_scc', 's_addc', 's_subb')

class Fill:
    def __init__(self):
        self.q = []
    def push(self, items):
        self.q.extend(items)
    def run(self, budget):
        while self.q and budget > 0:
            f, c, t = self.q.pop(0)
            f(); budget -= c
            while self.q and self.q[0][2].startswith(SCC_READERS):
                f, c, t = self.q.pop(0)
                f(); budget -= c
        return budget
    def flush(self):
        self.run(10 ** 9)
    def cost(self):
        return sum(c for f, c, t in self.q)
```

```python
import sys, os, struct
sys.path.insert(0, os.path.dirname(__file__))
from asmlib import Asm, Fill

NAME = 'parallel_sum__ssm_conv_s5__dense_activation_mish__prompt'
OPT = dict(x.split('=') for x in sys.argv[2:] if '=' in x)
def opt(k, d): return type(d)(OPT.get(k, d))
STAMP = opt('stamp', 0)
K = 1024

WS_STATS = 0x0
AGG_ROW = 704 * 16
WS_AGG = 0x10000
WS_FA2 = 0x70000
WS_STAMP = 0x80000
WS_FP = 0xC0000
WS_BASE = 0x100000
WS_A2 = 0x800000
WS_PART = 0x1400000
WS_END = 0x3400000
OOB = 0x7FFF0000
SPIN_MAX = 40000

sW, sKQ, sR, sJJ, sU, sISS, sBLK, sN0 = 3, 4, 5, 6, 7, 8, 9, 10
sT0, sT1, sT2, sT3, sT4 = 11, 12, 13, 14, 15
P_X, P_LRE, P_LIM, P_BRE, P_BIM, P_CRE, P_CIM, P_LDT, P_DSK, P_BX, P_W1, P_B1, P_W2, P_OUT, P_DBG, P_WS = [16 + 2 * i for i in range(16)]
SRD_X, SRD_B1, SRD_W2, SRD_CRE, SRD_CIM, SRD_WS, SRD_OUT, SRD_BASE = 48, 52, 56, 60, 64, 68, 72, 76
SRD_B2 = 36
sPOS = [80, 81, 82, 83]; sPANT = [84, 85, 86]; sSPIN = 87; sNON = 88; sPANN = [90, 91, 92]
sWA, sW1K, sSOA = 93, 94, 95
sM0, sM1 = 96, 98
sROW0, sK3 = 100, 101
sSOB, sSO2 = 34, 35
sMASK = [16, 17, 18, 19]; sA2P = [20, 21, 22, 23]; sFA2 = 24; sINB = 25; sSEND = [26, 27, 28]; sOUT0 = 29
sPRE = [30, 31, 32, 33]; sPC = [40, 41, 42, 43, 46, 47]
sH1, sH2 = 40, 41

def srd(n): return f's[{n}:{n+3}]'
def vr(n, k=1): return f'v{n}' if k == 1 else f'v[{n}:{n+k-1}]'
def ar(n, k=1): return f'a{n}' if k == 1 else f'a[{n}:{n+k-1}]'
def hexf(x): return '0x%08x' % struct.unpack('<I', struct.pack('<f', x))[0]

ACC = 0; OWN = 96
vL, vLI, vH, vL16 = 144, 145, 146, 147
VA = [148, 149, 150, 151]; VB1 = [152, 153, 154]
vZ = 155
vO = [156, 157]
VT2 = list(range(158, 164)); VN2 = [164, 165]
RA = [166, 167, 168, 169]; RB = list(range(170, 178))
LT2 = [178, 179]; LN2 = [180, 181, 182, 183]; CT2 = [184, 185]; CN2 = [186, 187, 188, 189]
SEL = 190; GR = 194; XC = 198; WC = 202
vB1 = list(range(216, 222))
vT = list(range(240, 256))
vFA = 239
vNV = 222
CA = [216, 218, 220]; CA8 = [222, 224, 226]; CC = [228, 230, 232]; A16, A128, A1024 = 234, 236, 174
aB, aA, aCS, aQ = 0, 72, 84, 72
SLOT1 = 40 * K
SLOT2 = [80*K, 104*K, 128*K, 0, 24*K, 48*K]
L_CS, L_RS, L_AG, L_TR = 152*K, 155*K, 72*K, 24*K
LOG2E = 0x3FB8AA3B

a = Asm()

def stamp(idx):
    if not STAMP: return
    def f():
        a(f'''s_memrealtime s[{sM1}:{sM1+1}]
        s_memtime s[{sM0}:{sM0+1}]''')
        a.wait_lg()
        a(f'''v_mov_b32 v{vT[15]}, s{sM1}
        v_mov_b32 v{vT[14]}, s{sM0}
        s_lshl_b32 s{sM0}, s2, 2
        s_add_u32 s{sM0}, s{sM0}, s{sW}
        s_lshl_b32 s{sM0}, s{sM0}, 7
        s_add_u32 s{sM0}, s{sM0}, {WS_STAMP + idx*4}''')
        a.vmem(f'buffer_store_dword v{vT[15]}, off, {srd(SRD_WS)}, s{sM0}', 'stamp')
        a.vmem(f'buffer_store_dword v{vT[14]}, off, {srd(SRD_WS)}, s{sM0} offset:64', 'stamp')
    a.group(f)

def mk_srd(d, p, nbytes, add=0):
    if add:
        a(f's_add_u32 s{d}, s{p}, {add}\ns_addc_u32 s{d+1}, s{p+1}, 0')
    else:
        a(f's_mov_b64 s[{d}:{d+1}], s[{p}:{p+1}]')
    a(f's_mov_b32 s{d+2}, {nbytes}\ns_mov_b32 s{d+3}, 0x20000')

def tau(dst, src, t):
    a(f'''v_bfe_u32 v{dst}, v{src}, 2, 1
    v_lshlrev_b32 v{dst}, 4, v{dst}
    v_and_b32 v{t}, 1, v{src}
    v_lshl_or_b32 v{dst}, v{t}, 3, v{dst}
    v_bfe_u32 v{t}, v{src}, 3, 2
    v_lshl_or_b32 v{dst}, v{t}, 1, v{dst}
    v_bfe_u32 v{t}, v{src}, 1, 1
    v_or_b32 v{dst}, v{dst}, v{t}''')

def spin(tag, reload_text, check_text):
    def f():
        ok, retry = a.newlabel('L_ok'), a.newlabel('L_rt')
        a.wait_vm(tag)
        a(f's_mov_b32 s{sSPIN}, 0\ns_branch {retry}_c')
        a.label(retry)
        a(reload_text + '\ns_waitcnt vmcnt(0)')
        a.label(retry + '_c')
        a(check_text)
        a(f'''s_cbranch_scc1 {ok}
        s_add_u32 s{sSPIN}, s{sSPIN}, 1
        s_cmp_lt_u32 s{sSPIN}, {SPIN_MAX}
        s_cbranch_scc1 {retry}''')
        a.label(ok)
    a.group(f)

def rbf(dst, src):
    a(f'v_cvt_pk_bf16_f32 v{dst}, v{src}, v{src}\nv_and_b32 v{dst}, 0xffff0000, v{dst}')

class Pipe:
    def __init__(self, period):
        self.q = []; self.hi = []; self.credit = 0.0; self.period = period; self.armed = None
    def push(self, items, hi=False):
        (self.hi if hi else self.q).extend(items)
    def pending(self): return len(self.q) + len(self.hi) + (self.armed is not None)
    def _arm(self):
        if self.armed is None and (self.hi or self.q):
            it = (self.hi or self.q).pop(0)
            n = 0
            if it[0]:
                a(it[0]); n = len(it[0].strip().split('\n'))
            self.armed = it
            return n
        return 0
    def tick(self, cycles):
        self.credit = min(self.credit + cycles, 1.5 * self.period)
        used = 0
        if self.armed is not None and self.credit >= self.period:
            self.credit -= self.period
            a.vmem(self.armed[1], self.armed[2]); self.armed = None; used += 1
        used += self._arm()
        return used
    def one(self):
        self._arm()
        if self.armed is not None:
            a.vmem(self.armed[1], self.armed[2]); self.armed = None
    def flush(self):
        while self.pending(): self.one()
    def ensure(self, tag):
        def has(): return any(i[2] == tag for i in self.q + self.hi) or (self.armed is not None and self.armed[2] == tag)
        while has(): self.one()
    def clone(self):
        p = Pipe(self.period); p.q = list(self.q); p.hi = list(self.hi); p.credit = self.credit; p.armed = self.armed
        return p

def emit_reads(lst, tag):
    for kind, t in lst:
        if kind == 'ds': a.ds(t, tag)
        else: a(t)

CAP32, CAP16 = opt('cap32', 5), opt('cap16', 1)
def run_group(pipe, fill, ms, rd, rdtag, bar=None, bar_after=3):
    caps = [CAP32 if '32x32' in m else CAP16 for m in ms]
    first = min(bar_after, len(ms) - 1) if bar else 0
    for i, m in enumerate(ms):
        if bar and i == first: bar()
        a(m)
        budget = caps[i]
        if i >= first:
            tot = sum(caps[i:])
            n = len(rd) if i == len(ms) - 1 else min(len(rd), -(-len(rd) * caps[i] // tot))
            emit_reads(rd[:n], rdtag); rd = rd[n:]; budget -= n
        budget -= pipe.tick(32 if '32x32' in m else 16)
        if budget > 0: fill.run(budget)
    assert not rd

def ids():
    T = vT
    a(f'''s_cmp_ge_u32 s2, 256
    s_cbranch_scc1 L_end
    s_load_dwordx16 s[16:31], s[0:1], 0
    s_load_dwordx16 s[32:47], s[0:1], 64
    s_memrealtime s[{sNON}:{sNON+1}]
    v_lshrrev_b32 v{T[0]}, 6, v0
    v_and_b32 v{vL}, 63, v0
    v_readfirstlane_b32 s{sW}, v{T[0]}
    s_and_b32 s{sKQ}, s2, 3
    s_bfe_u32 s{sT0}, s2, 0x10002
    s_lshl_b32 s{sT0}, s{sT0}, 3
    s_lshr_b32 s{sT1}, s2, 5
    s_add_u32 s{sR}, s{sT0}, s{sT1}
    s_bfe_u32 s{sJJ}, s2, 0x20003
    s_cmp_eq_u32 s{sKQ}, 3
    s_cselect_b32 s{sK3}, 1, 0
    s_sub_u32 s{sT0}, 2, s{sK3}
    s_cmp_lt_u32 s{sJJ}, s{sT0}
    s_cselect_b32 s{sISS}, 1, 0
    s_lshl_b32 s{sT1}, s{sR}, 7
    s_lshl_b32 s{sT2}, s{sW}, 5
    s_add_u32 s{sROW0}, s{sT1}, s{sT2}
    s_lshl_b32 s{sWA}, s{sW}, 12
    s_lshl_b32 s{sW1K}, s{sW}, 10''')
    a(f'''v_lshrrev_b32 v{T[0]}, 3, v{vL}
    v_and_b32 v{T[1]}, 7, v{vL}
    v_lshrrev_b32 v{T[2]}, 1, v{T[0]}
    v_xor_b32 v{T[2]}, v{T[2]}, v{T[1]}
    v_lshlrev_b32 v{T[2]}, 4, v{T[2]}
    v_bfe_u32 v{T[3]}, v{T[0]}, 1, 1
    v_lshlrev_b32 v{T[3]}, 2, v{T[3]}
    v_xor_b32 v{T[3]}, v{T[3]}, v{T[1]}
    v_lshlrev_b32 v{T[3]}, 4, v{T[3]}''')
    tau(T[4], T[0], T[5])
    a(f'''v_add_u32 v{T[4]}, s{sROW0}, v{T[4]}
    v_mul_u32_u24 v{T[4]}, 1280, v{T[4]}
    v_add_u32 v{VA[0]}, v{T[4]}, v{T[2]}
    v_xor_b32 v{T[5]}, 64, v{T[2]}
    v_add_u32 v{T[6]}, v{T[4]}, v{T[5]}
    v_add_u32 v{VA[1]}, 2560, v{T[6]}
    v_add_u32 v{VA[2]}, 5120, v{VA[0]}
    v_add_u32 v{VA[3]}, 7680, v{T[6]}''')
    a(f'''s_lshl_b32 s{sT1}, s{sW}, 3
    s_and_b32 s{sT2}, s{sW}, 1
    s_lshl_b32 s{sT2}, s{sT2}, 6
    v_add_u32 v{T[4]}, s{sT1}, v{T[0]}
    v_xor_b32 v{T[5]}, s{sT2}, v{T[2]}
    v_mul_u32_u24 v{T[7]}, 1280, v{T[4]}
    v_add_u32 v{T[6]}, v{T[7]}, v{T[5]}
    s_lshl_b32 s{sT1}, s{sKQ}, 1
    s_add_u32 s{sT1}, s{sT1}, s{sJJ}''')

def g1_items(s, is_s):
    slot = SLOT1 * (s % 4)
    sob = s * 128 if is_s else s * 64 * 3456
    items = []
    for q in range(4):
        pre = f's_add_u32 m0, s{sWA}, {slot + q*1024}'
        if q == 0: pre = f's_mov_b32 s{sSOA}, {s*128}\n' + pre
        items.append((pre, f'buffer_load_dwordx4 v{VA[q]}, {srd(SRD_X)}, s{sSOA} offen lds', ('g1', s)))
    for q in range(6):
        if is_s:
            pre = f's_add_u32 m0, s{sW1K}, {slot + 16384 + q*4096}'
            ld = f'buffer_load_dwordx4 v{VB1[q % 3]}, {srd(SRD_B1 if q < 3 else SRD_B2)}, s{sSOA} offen lds'
        else:
            pan = q >> 1
            pre = f's_add_u32 m0, s{sW1K}, {slot + 16384 + q*4096 - pan*128}'
            if q == 0: pre = f's_mov_b32 s{sSOB}, {sob}\n' + pre
            ld = f'buffer_load_dwordx4 v{VB1[q & 1]}, {srd(SRD_B1)}, s{sSOB} offen offset:{pan*128} lds'
        items.append((pre, ld, ('g1', s)))
    return items

def g2_items(idx, slot, typ, so_pre, so):
    items = []
    for q in range(4 if typ == 'short' else 6):
        sub = q >> 1
        if typ == 't':
            pre = f's_add_u32 m0, s{sW1K}, {slot + q*4096}'
            ld = f'buffer_load_dwordx4 v{VT2[q]}, {srd(SRD_W2)}, s{so} offen lds'
        elif typ == 'short':
            pre = f's_add_u32 m0, s{sW1K}, {slot + q*4096}'
            ld = f'buffer_load_dwordx4 v{VN2[q & 1]}, {srd(SRD_CRE if sub == 0 else SRD_CIM)}, s{so} offen lds'
        else:
            pre = f's_add_u32 m0, s{sW1K}, {slot + q*4096 - sub*128}'
            ld = f'buffer_load_dwordx4 v{VN2[q & 1]}, {srd(SRD_CRE if typ == "re" else SRD_CIM)}, s{so} offen offset:{sub*128} lds'
        if q == 0 and so_pre: pre = so_pre + '\n' + pre
        items.append((pre, ld, ('g2', idx)))
    return items

def nk_lane(dst, kk2, t0):
    a(f'''v_add_u32 v{dst}, {kk2}, v{vH}
    v_xor_b32 v{dst}, v{dst}, v{t0}
    v_lshlrev_b32 v{dst}, 4, v{dst}
    v_lshl_add_u32 v{dst}, v{vLI}, 7, v{dst}''')

def tr_lane(dst, t0):
    a(f'''v_bfe_u32 v{t0}, v{vL}, 2, 2
    v_lshl_add_u32 v{dst}, v{vH}, 3, v{t0}
    v_lshlrev_b32 v{dst}, 7, v{dst}
    v_lshrrev_b32 v{t0}, 1, v{t0}
    v_lshl_or_b32 v{dst}, v{t0}, 6, v{dst}
    v_bfe_u32 v{t0}, v{vL}, 4, 1
    v_lshl_or_b32 v{dst}, v{t0}, 5, v{dst}''')

def read_setup(is_s):
    T = vT
    a(f'''v_and_b32 v{vLI}, 31, v{vL}
    v_lshrrev_b32 v{vH}, 5, v{vL}
    v_bfe_u32 v{T[8]}, v{vL}, 1, 3''')
    for kk in range(4): nk_lane(LN2[kk], 2 * kk, T[8])
    a(f's_lshl_b32 s{sT2}, s{sW}, 5')
    for p in range(4):
        if is_s:
            a(f'v_xor_b32 v{RB[p]}, s{sT2}, v{LN2[p]}\nv_add_u32 v{RA[p]}, s{sWA}, v{RB[p]}')
        else:
            a(f'v_xor_b32 v{RA[p]}, s{sT2}, v{LN2[p]}\nv_add_u32 v{RA[p]}, s{sWA}, v{RA[p]}')
    tr_lane(LT2[0], T[8])
    if not is_s:
        a(f'''v_and_b32 v{T[8]}, 1, v{vL}
        v_lshl_or_b32 v{T[9]}, v{T[8]}, 4, v{LT2[0]}
        v_bfe_u32 v{T[8]}, v{vL}, 1, 1
        v_lshl_or_b32 v{T[9]}, v{T[8]}, 3, v{T[9]}
        s_lshl_b32 s{sT2}, s{sW}, 11
        v_or_b32 v{T[9]}, s{sT2}, v{T[9]}''')
        for p in range(4):
            a(f'v_xor_b32 v{RB[2*p]}, {p << 11}, v{T[9]}\nv_xor_b32 v{RB[2*p+1]}, {(p << 11) | 64}, v{T[9]}')
    a(f'''v_bfe_u32 v{T[8]}, v{vL}, 2, 1
    v_bfe_u32 v{T[9]}, v{vL}, 4, 1
    v_cmp_eq_u32 vcc, v{T[8]}, v{T[9]}
    v_mov_b32 v{T[8]}, 0x3f803f80
    v_mov_b32 v{vZ}, 0''')
    for i in range(4): a(f'v_cndmask_b32 v{SEL+i}, 0, v{T[8]}, vcc')

SX_RAW, SD_RAW, SX, SE = OWN, OWN + 10, OWN + 20, 200
def early_loads(is_s):
    T = vT
    a(f'''s_lshl_b32 s{sU}, s{sKQ}, 2
    s_add_u32 s{sU}, s{sU}, s{sJJ}
    s_lshl_b32 s{sT2}, s{sR}, 7
    s_lshl_b32 s{sT3}, s{sU}, 3
    s_add_u32 s{sT2}, s{sT2}, s{sT3}
    s_lshl_b32 s{sT3}, s{sW}, 1
    s_add_u32 s{sT2}, s{sT2}, s{sT3}
    v_add_u32 v{T[12]}, s{sT2}, v{vH}
    v_mul_u32_u24 v{T[10]}, 1280, v{T[12]}
    v_lshlrev_b32 v{T[11]}, 3, v{vLI}
    v_add_u32 v{T[10]}, v{T[10]}, v{T[11]}''')
    for m in range(5):
        a.vmem(f'buffer_load_dwordx2 {vr(SX_RAW + 2*m, 2)}, v{T[10]}, {srd(SRD_X)}, 0 offen offset:{m*256}', 'xs')
    for m in range(5):
        a.vmem(f'global_load_dwordx2 {vr(SD_RAW + 2*m, 2)}, v{T[11]}, s[{P_DSK}:{P_DSK+1}] offset:{m*256}', 'xs')
    if is_s:
        for j in range(3):
            a(f'''v_add_u32 v{T[13]}, s{sBLK}, v{vLI}
            v_add_u32 v{T[13]}, {32*j}, v{T[13]}
            v_min_u32 v{T[13]}, 639, v{T[13]}
            v_lshlrev_b32 v{T[13]}, 1, v{T[13]}''')
            for dst, P in ((CA8[j], P_LRE), (CA8[j] + 1, P_LIM), (CC[j], P_LDT)):
                a.vmem(f'global_load_ushort v{dst}, v{T[13]}, s[{P}:{P+1}]', 'prm')
    else:
        a(f'''v_and_b32 v{T[13]}, 0x13, v{vLI}
        v_bfe_u32 v{T[14]}, v{vLI}, 2, 1
        v_lshl_or_b32 v{T[13]}, v{T[14]}, 3, v{T[13]}
        v_bfe_u32 v{T[14]}, v{vLI}, 3, 1
        v_lshl_or_b32 v{T[13]}, v{T[14]}, 2, v{T[13]}
        v_lshlrev_b32 v{T[13]}, 1, v{T[13]}
        v_add_u32 v{T[13]}, s{sT4}, v{T[13]}''')
        for t in range(6):
            a.vmem(f'global_load_ushort v{vB1[t]}, v{T[13]}, s[{P_B1}:{P_B1+1}] offset:{t*64}', 'prm')

def tables():
    T = vT
    mk_srd(SRD_W2, P_W2, 1728 * 1280)
    mk_srd(SRD_CRE, P_CRE, 640 * 1280)
    mk_srd(SRD_CIM, P_CIM, 640 * 1280)
    mk_srd(SRD_OUT, P_OUT, 2048 * 2560)
    mk_srd(SRD_BASE, P_WS, 2048 * 2560, add=WS_BASE)
    a(f'''s_lshl_b32 s{sN0}, s{sJJ}, 7
    s_cmp_eq_u32 s{sJJ}, 3
    s_cselect_b32 s{sN0}, 448, s{sN0}''')
    a(f'''s_sub_u32 s{sT0}, 2, s{sK3}
    s_add_u32 s{sT4}, s{sK3}, 2
    s_cmp_lt_u32 s{sJJ}, 2
    s_cselect_b32 s{sT1}, 0, s{sBLK}
    s_add_u32 s{sT2}, s{sT1}, 1
    s_cmp_eq_u32 s{sT2}, s{sT4}
    s_cselect_b32 s{sT2}, 0, s{sT2}
    s_add_u32 s{sT3}, s{sT2}, 1
    s_cmp_eq_u32 s{sT3}, 3
    s_cselect_b32 s{sT3}, 0, s{sT3}
    s_cmp_eq_u32 s{sK3}, 1
    s_cselect_b32 s{sT3}, s{sT3}, 2
    s_add_u32 s{sT4}, s{sT1}, s{sT0}
    s_lshl_b32 s{sMASK[0]}, 1, s{sT4}
    s_add_u32 s{sT4}, s{sT2}, s{sT0}
    s_lshl_b32 s{sMASK[1]}, 1, s{sT4}
    s_add_u32 s{sT4}, s{sT3}, 1
    s_lshl_b32 s{sMASK[2]}, 1, s{sT4}
    s_cmp_eq_u32 s{sK3}, 1
    s_cselect_b32 s{sMASK[2]}, s{sMASK[2]}, 3
    s_cselect_b32 s{sMASK[3]}, 1, 3''')
    a(f'''s_lshl_b32 s{sT4}, s{sR}, 2
    s_add_u32 s{sT4}, s{sT4}, s{sW}
    s_lshl_b32 s{sT4}, s{sT4}, 2
    s_add_u32 s{sT4}, s{sT4}, s{sKQ}
    s_lshl_b32 s{sFA2}, s{sT4}, 8
    s_add_u32 s{sFA2}, s{sFA2}, {WS_FA2}
    s_mul_i32 s{sT4}, s{sT4}, 49152
    s_add_u32 s{sT4}, s{sT4}, {WS_A2}''')
    for i, b in enumerate((sT1, sT2, sT3)):
        a(f's_mul_i32 s{sA2P[i]}, s{b}, 12288\ns_add_u32 s{sA2P[i]}, s{sA2P[i]}, s{sT4}')
    a(f's_add_u32 s{sA2P[3]}, s{sT4}, 36864')
    a(f's_lshl_b32 s{sT4}, s{sKQ}, 1')
    for i, b in enumerate((sT1, sT2, sT3)):
        a(f's_add_u32 s{sT0}, s{sT4}, s{b}\ns_mul_i32 s{sPOS[i]}, s{sT0}, {192*1280}')
    a(f'''s_mul_i32 s{sPOS[3]}, s{sKQ}, 384
    s_cmp_eq_u32 s{sK3}, 1
    s_cselect_b32 s{sPOS[2]}, s{sPOS[2]}, s{sPOS[3]}''')
    a(f'''s_add_u32 s{sT1}, s{sKQ}, 1
    s_cmp_ge_u32 s{sT1}, 3
    s_cselect_b32 s{sT0}, 3, 0
    s_sub_u32 s{sT1}, s{sT1}, s{sT0}
    s_add_u32 s{sT2}, s{sT1}, 1
    s_cmp_eq_u32 s{sT2}, 3
    s_cselect_b32 s{sT2}, 0, s{sT2}
    s_sub_u32 s{sT3}, 3, s{sT1}
    s_sub_u32 s{sT3}, s{sT3}, s{sT2}
    s_xor_b32 s{sSEND[0]}, s{sKQ}, 3
    s_xor_b32 s{sSEND[1]}, s{sKQ}, 2
    s_xor_b32 s{sSEND[2]}, s{sKQ}, 1
    s_lshr_b32 s{sT4}, s{sKQ}, 1
    s_xor_b32 s{sT0}, s{sT4}, 1
    s_cmp_lt_u32 s{sJJ}, 2
    s_cselect_b32 s{sSEND[0]}, s{sSEND[0]}, s{sT1}
    s_cselect_b32 s{sSEND[1]}, s{sSEND[1]}, s{sT2}
    s_cselect_b32 s{sSEND[2]}, s{sSEND[2]}, s{sT3}
    s_cselect_b32 s{sT1}, s{sT0}, s{sT1}
    s_cselect_b32 s{sT2}, s{sT4}, s{sT2}''')
    for i, p in enumerate((sT1, sT2, sT3)):
        a(f'''s_lshl_b32 s{sT0}, s{p}, 6
        s_add_u32 s{sT0}, s{sT0}, s{sN0}
        s_lshl_b32 s{sPANT[i]}, s{sT0}, 1
        s_mul_i32 s{sPANN[i]}, s{sT0}, 1280''')
    a(f'''s_add_u32 s{sPRE[0]}, s{sPOS[0]}, s{sPANT[0]}
    s_add_u32 s{sT1}, s{sPOS[0]}, s{sPANT[1]}
    s_add_u32 s{sT2}, s{sPOS[0]}, s{sPANT[2]}
    s_add_u32 s{sT3}, s{sPOS[1]}, s{sPANT[0]}
    s_add_u32 s{sT4}, s{sPOS[1]}, s{sPANT[1]}
    s_cmp_lt_u32 s{sJJ}, 2
    s_cselect_b32 s{sPRE[1]}, s{sT3}, s{sT1}
    s_cselect_b32 s{sPRE[2]}, s{sT1}, s{sT2}
    s_cselect_b32 s{sPRE[3]}, s{sT4}, s{sT3}''')
    a(f'''s_lshl_b32 s{sT4}, s{sR}, 2
    s_add_u32 s{sT4}, s{sT4}, s{sJJ}
    s_lshl_b32 s{sT4}, s{sT4}, 2
    s_add_u32 s{sT4}, s{sT4}, s{sW}
    s_lshl_b32 s{sT4}, s{sT4}, 2''')
    for i in range(3):
        a(f'''s_add_u32 s{sSEND[i]}, s{sSEND[i]}, s{sT4}
        s_lshl_b32 s{sSEND[i]}, s{sSEND[i]}, 2
        s_add_u32 s{sSEND[i]}, s{sSEND[i]}, s{sKQ}''')
    a(f'''s_add_u32 s{sINB}, s{sT4}, s{sKQ}
    s_lshl_b32 s{sINB}, s{sINB}, 2''')
    a(f'''s_cmp_lt_u32 s{sJJ}, 2
    s_cselect_b32 s{sT0}, 5, 6
    s_lshl_b32 s{sT0}, s{sKQ}, s{sT0}
    s_add_u32 s{sT0}, s{sT0}, s{sN0}
    s_lshl_b32 s{sT0}, s{sT0}, 2
    s_mul_i32 s{sOUT0}, s{sROW0}, 2560
    s_add_u32 s{sOUT0}, s{sOUT0}, s{sT0}''')
    a(f'''s_and_b32 s{sT0}, s{sKQ}, 1
    s_xor_b32 s{sT0}, s{sT0}, 1
    s_cmp_lt_u32 s{sJJ}, 2
    s_cselect_b32 s{sT0}, s{sT0}, 0
    s_lshl_b32 s{sT1}, s{sT0}, 6
    s_mul_i32 s{sT2}, s{sT0}, 40960
    s_sub_u32 s{sT3}, 40960, s{sT2}
    v_xor_b32 v{T[8]}, s{sT1}, v{T[3]}
    v_add_u32 v{VT2[0]}, v{T[7]}, v{T[8]}
    v_add_u32 v{VN2[0]}, s{sT2}, v{T[6]}
    v_add_u32 v{VN2[1]}, s{sT3}, v{T[6]}''')
    for q in range(1, 6): a(f'v_add_u32 v{VT2[q]}, {q*40960}, v{VT2[0]}')
    a(f'''v_and_b32 v{T[8]}, 3, v{vL}
    v_lshl_or_b32 v{LT2[0]}, v{T[8]}, 3, v{LT2[0]}
    v_xor_b32 v{LT2[1]}, 64, v{LT2[0]}
    v_lshlrev_b32 v{vFA}, 6, v{T[8]}
    v_lshlrev_b32 v{vL16}, 4, v{vL}
    v_mul_u32_u24 v{vO[0]}, {16*2560}, v{vH}
    v_lshl_add_u32 v{vO[0]}, v{vLI}, 2, v{vO[0]}
    v_add_u32 v{vO[1]}, 20480, v{vO[0]}''')

def reduce32(v, t):
    for mod in ('quad_perm:[1,0,3,2]', 'quad_perm:[2,3,0,1]', 'row_half_mirror', 'row_mirror'):
        a(f'v_add_f32_dpp v{v}, v{v}, v{v} {mod} row_mask:0xf bank_mask:0xf')
    a(f'v_mov_b32 v{t}, v{v}\nv_permlane16_swap_b32 v{v}, v{t}\nv_add_f32 v{v}, v{v}, v{t}')

def stats_and_base():
    T = vT
    X = SX
    s0, s1, s2, s3 = OWN + 40, OWN + 41, OWN + 42, OWN + 43
    a.wait_vm('xs')
    for i in range(10):
        a(f'v_lshlrev_b32 v{X+2*i}, 16, v{SX_RAW+i}\nv_and_b32 v{X+2*i+1}, 0xffff0000, v{SX_RAW+i}')
    a(f'v_add_f32 v{s0}, v{X}, v{X+1}\nv_add_f32 v{s1}, v{X+2}, v{X+3}')
    for i in range(4, 20, 2):
        a(f'v_add_f32 v{s0}, v{s0}, v{X+i}\nv_add_f32 v{s1}, v{s1}, v{X+i+1}')
    a(f'v_add_f32 v{s0}, v{s0}, v{s1}')
    reduce32(s0, s1)
    a(f'v_mul_f32 v{s0}, {hexf(1.0/640)}, v{s0}\nv_mov_b32 v{s2}, 0\nv_mov_b32 v{s3}, 0')
    for i in range(0, 20, 2):
        a(f'''v_sub_f32 v{T[0]}, v{X+i}, v{s0}
        v_sub_f32 v{T[1]}, v{X+i+1}, v{s0}
        v_fmac_f32 v{s2}, v{T[0]}, v{T[0]}
        v_fmac_f32 v{s3}, v{T[1]}, v{T[1]}''')
    a(f'v_add_f32 v{s2}, v{s2}, v{s3}')
    reduce32(s2, s3)
    a(f'v_mul_f32 v{s2}, {hexf(1.0/640)}, v{s2}')
    rbf(s2, s2)
    a(f'v_add_f32 v{s2}, {hexf(1e-5)}, v{s2}')
    rbf(s2, s2)
    a(f'v_sqrt_f32 v{s2}, v{s2}')
    rbf(GR + 1, s2)
    rbf(GR, s0)
    a(f'v_rcp_f32 v{s1}, v{GR+1}')
    a(f'v_mul_u32_u24 v{s3}, 2560, v{T[12]}\nv_lshl_add_u32 v{s3}, v{vLI}, 4, v{s3}')
    for m in range(5):
        for hh in range(2):
            i = 4 * m + 2 * hh
            d = SD_RAW + i // 2
            a(f'''v_sub_f32 v{T[0]}, v{X+i}, v{GR}
            v_sub_f32 v{T[1]}, v{X+i+1}, v{GR}
            v_lshlrev_b32 v{T[2]}, 16, v{d}
            v_and_b32 v{T[4]}, 0xffff0000, v{d}
            v_mul_f32 v{T[0]}, v{T[0]}, v{s1}
            v_mul_f32 v{T[1]}, v{T[1]}, v{s1}
            v_fmac_f32 v{X+i}, v{T[0]}, v{T[2]}
            v_fmac_f32 v{X+i+1}, v{T[1]}, v{T[4]}''')
        a.vmem(f'buffer_store_dwordx4 {vr(X + 4*m, 4)}, v{s3}, {srd(SRD_BASE)}, 0 offen offset:{m*512} sc1', 'base')
    a(f'v_lshlrev_b32 v{XC+3}, 4, v{T[12]}')
    a.vmem(f'global_load_dwordx2 v[{XC}:{XC+1}], v{vZ}, s[{P_DBG}:{P_DBG+1}] sc1', 'nonce')

def publish_stats():
    spin('nonce', f'global_load_dwordx2 v[{XC}:{XC+1}], v{vZ}, s[{P_DBG}:{P_DBG+1}] sc1',
         f'v_readfirstlane_b32 s{sNON}, v{XC}\nv_readfirstlane_b32 s{sNON+1}, v{XC+1}\ns_cmp_lg_u32 s{sNON}, 0')
    def f():
        a(f'''v_mov_b32 v{GR+2}, s{sNON}
        v_mov_b32 v{GR+3}, s{sNON+1}
        s_mov_b32 exec_lo, 1
        s_mov_b32 exec_hi, 1''')
        a.vmem(f'buffer_store_dwordx4 v[{GR}:{GR+3}], v{XC+3}, {srd(SRD_WS)}, 0 offen sc1', 'pub')
        a('s_mov_b64 exec, -1')
    a.group(f)

GR_LD = f'buffer_load_dwordx4 v[{GR}:{GR+3}], v{XC+3}, {srd(SRD_WS)}, 0 offen sc1'
def stats_load_issue():
    tau(XC + 3, vLI, XC + 2)
    a(f'v_add_u32 v{XC+3}, s{sROW0}, v{XC+3}\nv_lshlrev_b32 v{XC+3}, 4, v{XC+3}')
    a.vmem(GR_LD, 'gr')

def stats_use():
    T = vT
    spin('gr', GR_LD, f'v_cmp_eq_u64 vcc, s[{sNON}:{sNON+1}], v[{GR+2}:{GR+3}]\ns_cmp_eq_u64 vcc, -1')
    a(f'''v_cmp_eq_u32 vcc, 0, v{vH}
    v_xor_b32 v{T[2]}, 0x80000000, v{GR}
    v_lshrrev_b32 v{T[3]}, 16, v{T[2]}
    v_or_b32 v{T[4]}, v{T[3]}, v{T[2]}
    v_or_b32 v{T[5]}, v{T[3]}, v{GR+1}
    v_cndmask_b32 v{XC}, 0, v{T[4]}, vcc
    v_cndmask_b32 v{XC+1}, 0, v{T[5]}, vcc
    v_mov_b32 v{XC+2}, 0
    v_mov_b32 v{XC+3}, 0
    v_mov_b32 v{WC+12}, 0
    v_mov_b32 v{WC+13}, 0
    v_rcp_f32 v{GR+2}, v{GR+1}
    v_lshlrev_b32 v{T[0]}, 4, v{vLI}
    s_lshl_b32 s{sT1}, s{sW}, 2
    v_add_u32 v{T[0]}, {L_CS}, v{T[0]}
    v_add_u32 v{T[1]}, s{sT1}, v{T[0]}''')

def startup(is_s, pipe, fill):
    T = vT
    if is_s:
        a(f's_mul_i32 s{sBLK}, s{sT1}, 96\ns_mul_i32 s{sT2}, s{sBLK}, 1280')
        a(f'v_add_u32 v{VB1[0]}, s{sT2}, v{T[6]}\nv_add_u32 v{VB1[1]}, 40960, v{VB1[0]}\nv_add_u32 v{VB1[2]}, 81920, v{VB1[0]}')
    else:
        a(f'''s_sub_u32 s{sBLK}, s{sJJ}, s{sT0}
        s_sub_u32 s{sT4}, s{sT1}, s{sT0}
        s_mul_i32 s{sT4}, s{sT4}, 384
        v_mul_u32_u24 v{T[8]}, 3456, v{T[4]}
        v_add3_u32 v{VB1[0]}, v{T[8]}, v{T[3]}, s{sT4}
        v_add_u32 v{VB1[1]}, {32*3456}, v{VB1[0]}''')
    a('s_waitcnt lgkmcnt(0)')
    mk_srd(SRD_X, P_X, 2048 * 1280)
    if is_s:
        mk_srd(SRD_B1, P_BRE, 640 * 1280); mk_srd(SRD_B2, P_BIM, 640 * 1280)
    else:
        mk_srd(SRD_B1, P_W1, 640 * 3456)
    def nonce_pub():
        lab = a.newlabel('L_nn')
        a(f'''s_or_b32 s{sT2}, s2, s{sW}
        s_cmp_lg_u32 s{sT2}, 0
        s_cbranch_scc1 {lab}
        s_or_b32 s{sNON}, s{sNON}, 1
        v_mov_b32 v{T[14]}, s{sNON}
        v_mov_b32 v{T[15]}, s{sNON+1}
        v_mov_b32 v{T[13]}, 0
        global_store_dwordx2 v{T[13]}, v[{T[14]}:{T[15]}], s[{P_DBG}:{P_DBG+1}] sc1''')
        a.label(lab)
    def seq():
        mk_srd(SRD_WS, P_WS, WS_END)
        if STAMP:
            a(f'''v_mov_b32 v{T[15]}, s{sNON}
            s_lshl_b32 s{sM0}, s2, 2
            s_add_u32 s{sM0}, s{sM0}, s{sW}
            s_lshl_b32 s{sM0}, s{sM0}, 7
            s_add_u32 s{sM0}, s{sM0}, {WS_STAMP}''')
            a.vmem(f'buffer_store_dword v{T[15]}, off, {srd(SRD_WS)}, s{sM0}', 'stamp')
        stamp(1)
        read_setup(is_s)
        early_loads(is_s)
        tables()
    if is_s: nonce_pub()
    fill.push(a.capture(seq))
    npre = opt('npre', 3)
    for s in range(npre): pipe.push(g1_items(s, is_s))
    per = -(-fill.cost() // (10 * npre - 4))
    i = 0
    while pipe.pending():
        pipe.one(); i += 1
        if i > 4: fill.run(per)
    fill.flush()
    for s in range(npre, 4): pipe.push(g1_items(s, is_s))

def gemm1(is_s, pipe, fill, hooks):
    TP = {0: (0, 1), 1: (2,), 2: (3, 4), 3: (5,)}
    def reads(n):
        s, p = divmod(n, 4); b = n % 3
        delta = SLOT1 if s % 4 != 3 else -3 * SLOT1
        out = [('ds', f'ds_read_b128 {ar(aA + 4*b, 4)}, v{RA[p]}')]
        for t in range(6):
            d = aB + 24 * b + 4 * t
            if is_s:
                out.append(('ds', f'ds_read_b128 {ar(d, 4)}, v{RB[p]} offset:{16384 + t*4096}'))
            else:
                for j in range(2):
                    out.append(('ds', f'ds_read_b64_tr_b16 {ar(d + 2*j, 2)}, v{RB[2*p + (t & 1)]} offset:{16384 + (t >> 1)*8192 + j*512}'))
        if s < 9:
            for r in [RA[p]] + ([RB[p]] if is_s else [RB[2*p], RB[2*p+1]]):
                out.append(('v', f'v_add_u32 v{r}, {delta & 0xffffffff}, v{r}'))
        return out
    seen = set()
    def mfmas(n):
        s, p = divmod(n, 4); b = n % 3
        out = []
        for t in range(6):
            A_, B_ = ar(aA + 4*b, 4), ar(aB + 24*b + 4*t, 4)
            c = vr(ACC + 16*t, 16) if n > 0 else '0'
            x, y = (A_, B_) if is_s else (B_, A_)
            out.append(f'v_mfma_f32_32x32x16_bf16 {vr(ACC + 16*t, 16)}, {x}, {y}, {c}')
            if t in TP[p]:
                c = ar(aCS + 4*t, 4) if t in seen else '0'
                seen.add(t)
                out.append(f'v_mfma_f32_16x16x32_bf16 {ar(aCS + 4*t, 4)}, {vr(SEL, 4)}, {B_}, {c}')
        return out
    pre_after = {6: [0], 7: [1, 2], 8: [3]}
    def mk_bar(s):
        def bar():
            a.wait_lg()
            if s < 9:
                pipe.ensure(('g1', s + 1)); a.wait_vm(('g1', s + 1))
            a('s_barrier')
            if s + 4 < 10: pipe.push(g1_items(s + 4, is_s))
            for i in pre_after.get(s, []):
                pipe.push(g2_items(i, SLOT2[i], 't', None, sPRE[i]))
        return bar
    a.wait_vm(('g1', 0))
    a('s_barrier')
    stamp(2)
    emit_reads(reads(0), ('k1', 0)); emit_reads(reads(1), ('k1', 1))
    for n in range(40):
        s, p = divmod(n, 4)
        if n in hooks: fill.push(a.capture(hooks[n]))
        a.wait_lg(('k1', n))
        bar = mk_bar(s) if (p == 2 and s < 9) else None
        run_group(pipe, fill, mfmas(n), reads(n + 2) if n + 2 < 40 else [], ('k1', n + 2), bar)
    print('  G1 leftover fill', fill.cost(), 'pipe', pipe.pending())
    fill.flush(); pipe.flush()

def correction(is_s):
    T = vT
    for t in range(6):
        a.ds(f'ds_write_b32 v{T[1]}, a{aCS + 4*t} offset:{t*512}', 'cs')
    a.wait_vm(('g2', 2))
    a.wait_lg()
    a('s_barrier')
    Q = OWN
    for t in range(6):
        a.ds(f'ds_read_b128 {vr(Q + 4*t, 4)}, v{T[0]} offset:{t*512}', ('csr', t))
    for t in range(6):
        q = Q + 4 * t
        a.wait_lg(('csr', t))
        a(f'''v_pk_add_f32 {vr(q,2)}, {vr(q,2)}, {vr(q+2,2)}
        v_add_f32 v{q}, v{q}, v{q+1}
        v_and_b32 v{q+1}, 0xffff0000, v{q}
        v_sub_f32 v{q+2}, v{q}, v{q+1}
        v_and_b32 v{q+3}, 0xffff0000, v{q+2}
        v_sub_f32 v{q+2}, v{q+2}, v{q+3}
        v_lshrrev_b32 v{q+1}, 16, v{q+1}
        v_or_b32 v{WC+2*t}, v{q+1}, v{q+3}
        v_alignbit_b32 v{WC+2*t+1}, v{vZ if is_s else vB1[t]}, v{q+2}, 16''')
        if t >= 1:
            x, y = (vr(XC, 4), vr(WC + 2*(t-1), 4)) if is_s else (vr(WC + 2*(t-1), 4), vr(XC, 4))
            a(f'v_mfma_f32_32x32x16_bf16 {vr(ACC + 16*(t-1), 16)}, {x}, {y}, {vr(ACC + 16*(t-1), 16)}')
    x, y = (vr(XC, 4), vr(WC + 10, 4)) if is_s else (vr(WC + 10, 4), vr(XC, 4))
    a(f'v_mfma_f32_32x32x16_bf16 {vr(ACC + 80, 16)}, {x}, {y}, {vr(ACC + 80, 16)}')

vFL = GR
vNO = XC
def flag_store(wait_tag, so_text):
    def f():
        a.wait_vm(wait_tag)
        a(so_text + '\ns_mov_b64 exec, 1')
        a.vmem(f'buffer_store_dwordx2 v[{vNO}:{vNO+1}], v{vZ}, {srd(SRD_WS)}, s{sT1} offen sc1', 'flag')
        a('s_mov_b64 exec, -1')
    a.group(f)
OWNFLAG = f's_lshl_b32 s{sT1}, s{sJJ}, 6\ns_add_u32 s{sT1}, s{sT1}, s{sFA2}'

def flag_ld(sg): return f'buffer_load_dwordx2 v[{vFL}:{vFL+1}], v{vFA}, {srd(SRD_WS)}, s{sg} offen sc1'
def flag_check(sg, mask):
    spin('fl', flag_ld(sg), f'''v_cmp_eq_u64 vcc, s[{sNON}:{sNON+1}], v[{vFL}:{vFL+1}]
    s_and_b32 s{sT1}, vcc_lo, {mask}
    s_cmp_eq_u32 s{sT1}, {mask}''')

def a2_items(pos, reg, nf=12):
    items = []
    for f in range(nf):
        pre = f's_add_u32 s{sH1}, s{sA2P[pos]}, {f*1024}' if f % 4 == 0 else None
        items.append((pre, f'buffer_load_dwordx4 {reg(f)}, v{vL16}, {srd(SRD_WS)}, s{sH1} offen offset:{(f % 4)*1024} sc1', ('a2', pos, f // 4)))
    return items

def gemm2(wide, k3, pipe, have):
    fill = Fill()
    A_, B_, O_ = 0, 1, 2
    typ = {0: 't', 1: 't', 2: 't' if k3 else 're', 3: 'short' if k3 else 'im'}
    nk = {0: 12, 1: 12, 2: 12, 3: 8 if k3 else 12}
    if wide:
        if not k3: stages = [(0,A_),(0,B_),(0,O_),(1,A_),(1,B_),(2,A_),(3,A_),(2,B_),(3,B_),(1,O_),(2,O_),(3,O_)]
        else:      stages = [(0,A_),(0,B_),(0,O_),(1,A_),(2,A_),(1,B_),(2,B_),(3,A_),(3,B_),(1,O_),(2,O_),(3,O_)]
        if opt('worder', 0) == 1 and not k3:
            stages = [(0,A_),(0,B_),(0,O_),(1,A_),(1,B_),(1,O_),(2,A_),(3,A_),(2,B_),(3,B_),(2,O_),(3,O_)]
        units = [(i, (0, 1)) for i in range(12)]
        accreg = lambda pan, e: ACC + {O_: 0, A_: 32, B_: 64}[pan] + 16 * e
        areg = lambda pos, f: vr(OWN + 4*f, 4) if pos == 0 else ar(aQ + 48*(pos - 1) + 4*f, 4)
        own = [] if k3 else [(O_, 0), (O_, 1)]
        sends = {A_: [(A_, 0), (A_, 1)], B_: [(B_, 0), (B_, 1)]}
        if k3: sends[O_] = [(O_, 0), (O_, 1)]
        recv = [OWN, ACC + 32, ACC + 64]
    else:
        stages = [(0,A_),(1,A_),(0,B_),(1,B_),(2,A_),(3,A_),(2,B_),(3,B_)]
        units = [(0,(0,1)),(1,(0,1)),(2,(0,)),(3,(0,)),(4,(0,1)),(5,(0,1)),(6,(0,)),(7,(0,)),(2,(1,)),(3,(1,)),(6,(1,)),(7,(1,))]
        accreg = lambda pan, e: ACC + (32 + 16*e if pan == A_ else (16 if e == 0 else 0))
        areg = lambda pos, f: vr(OWN + 4*f, 4) if pos == 3 else ar(aQ + 48*pos + 4*f, 4)
        own = [(B_, 1)]
        sends = {0: [(A_, 0)], 1: [(A_, 1)], 2: [(B_, 0)]}
        recv = [ACC + 64, ACC + 80, ACC + 32]
    mf = []
    for st, es in units:
        pos, pan = stages[st]
        for kk in range(nk[pos]):
            for e in es: mf.append((st, e, kk))
    groups = [mf[i:i+6] for i in range(0, len(mf), 6)]
    NG = len(groups)
    first_g = {}; last_g = {}; tile_last = {}; pos_first = {}
    for g, grp in enumerate(groups):
        for st, e, kk in grp:
            first_g.setdefault(st, g); last_g[st] = g
            tile_last[(stages[st][1], e)] = g
            pos_first.setdefault(stages[st][0], g)
    slot_of = {i: SLOT2[i] for i in range(4)}
    free = [SLOT2[4], SLOT2[5]]
    state = dict(next=4, cert=set(range(3)), freed=set())
    def push_more():
        while free and state['next'] < len(stages):
            i = state['next']; state['next'] += 1
            slot_of[i] = free.pop(0)
            pos, pan = stages[i]
            pp = sPANT if typ[pos] == 't' else sPANN
            pipe.push(g2_items(i, slot_of[i], typ[pos], f's_add_u32 s{sSO2}, s{sPOS[pos]}, s{pp[pan]}', sSO2))
    cur = {}
    def reads(g):
        out = []
        for i, (st, e, kk) in enumerate(groups[g]):
            d = aB + 24 * (g % 3) + 4 * i
            slot = slot_of[st]
            if typ[stages[st][0]] == 't':
                if cur.get(('t', e)) != slot:
                    cur[('t', e)] = slot; out.append(('v', f'v_add_u32 v{CT2[e]}, {slot}, v{LT2[e]}'))
                for j in range(2):
                    out.append(('ds', f'ds_read_b64_tr_b16 {ar(d + 2*j, 2)}, v{CT2[e]} offset:{kk*2048 + j*512}'))
            else:
                p = kk & 3
                if cur.get(('n', p)) != slot:
                    cur[('n', p)] = slot; out.append(('v', f'v_add_u32 v{CN2[p]}, {slot}, v{LN2[p]}'))
                out.append(('ds', f'ds_read_b128 {ar(d, 4)}, v{CN2[p]} offset:{(kk >> 2)*8192 + e*4096}'))
        return out
    started = set()
    def mfmas(g):
        out = []
        for i, (st, e, kk) in enumerate(groups[g]):
            pos, pan = stages[st]
            r = vr(accreg(pan, e), 16)
            c = r if ((pan, e) in started or (pan, e) in own) else '0'
            started.add((pan, e))
            out.append(f'v_mfma_f32_32x32x16_bf16 {r}, {areg(pos, kk)}, {ar(aB + 24*(g % 3) + 4*i, 4)}, {c}')
        return out
    def mk_bar(g):
        need = [st for st, e, kk in groups[g + 2] if st not in state['cert']] if g + 2 < NG else []
        freeable = [st for st in slot_of if st not in state['freed'] and last_g[st] <= g + 1]
        if not need and not (freeable and state['next'] < len(stages)): return None
        def bar():
            a.wait_lg()
            for st in sorted(set(need)):
                pipe.ensure(('g2', st)); a.wait_vm(('g2', st)); state['cert'].add(st)
            for st in slot_of:
                if st not in state['cert'] and ('g2', st) not in a.vm and not any(i[2] == ('g2', st) for i in pipe.q + pipe.hi) and not (pipe.armed and pipe.armed[2] == ('g2', st)):
                    state['cert'].add(st)
            a('s_barrier')
            for st in freeable:
                state['freed'].add(st); free.append(slot_of[st])
            push_more()
        return bar
    hooks = {}
    def add(g, f): hooks.setdefault(max(0, min(g, NG - 1)), []).append(f)
    LEAD, FL = opt('lead', 6), opt('flead', 4)
    polls = []
    for pos in sorted(pos_first, key=lambda p: pos_first[p]):
        if pos in have or (wide and pos == 0): continue
        polls.append(pos)
    og = opt('oflag', 5) if wide else 0
    add(og, lambda: flag_store('a2s', OWNFLAG))
    done = set()
    for pos in polls:
        if pos in done: continue
        both = [pos] + ([3] if (pos == 2 and not k3) else [])
        done.update(both)
        gc = pos_first[pos] - LEAD
        assert gc >= og
        add(gc - FL, lambda: a.vmem(flag_ld(sFA2), 'fl'))
        def get(both=both):
            flag_check(sFA2, f's{sMASK[both[0]]}')
            for p in both:
                pipe.push(a2_items(p, lambda f, p=p: areg(p, f), nk[p]), hi=True)
        add(gc, get)
    SL = opt('slag', 6)
    late_flags = []; lastf = 0
    for i, tiles in sends.items():
        g = max(tile_last[t] for t in tiles)
        def snd(i=i, tiles=tiles):
            items = []
            for n, (pan, e) in enumerate(tiles):
                for q in range(4):
                    pre = f's_lshl_b32 s{sH2}, s{sSEND[i]}, 13\ns_add_u32 s{sH2}, s{sH2}, {WS_PART + n*4096}' if q == 0 else None
                    items.append((pre, f'buffer_store_dwordx4 {vr(accreg(pan, e) + 4*q, 4)}, v{vL16}, {srd(SRD_WS)}, s{sH2} offen offset:{q*1024} sc1', ('ps', i)))
            pipe.push(items, hi=True)
        def flg(i=i):
            pipe.ensure(('ps', i))
            flag_store(('ps', i), f's_lshl_b32 s{sT1}, s{sSEND[i]}, 6\ns_add_u32 s{sT1}, s{sT1}, {WS_FP}')
        if g + 1 < NG: add(g + 1, snd)
        else: late_flags.append(snd)
        if g + 1 + SL < NG:
            add(g + 1 + SL, flg); lastf = max(lastf, g + 1 + SL)
        else: late_flags.append(flg)
    RL = opt('rlead', 5)
    def rcv_issue():
        a(f's_lshl_b32 s{sT2}, s{sINB}, 6\ns_add_u32 s{sT2}, s{sT2}, {WS_FP}\ns_lshl_b32 s{sT3}, 1, s{sKQ}\ns_xor_b32 s{sT3}, s{sT3}, 15')
        a.vmem(flag_ld(sT2), 'fl')
    def rcv_get():
        flag_check(sT2, f's{sT3}')
        items = []
        for i in range(3):
            for n in range(len(own)):
                for q in range(4):
                    pre = None
                    if q == 0:
                        pre = f'''s_add_u32 s{sH1}, s{sKQ}, {i + 1}
                        s_and_b32 s{sH1}, s{sH1}, 3
                        s_add_u32 s{sH1}, s{sH1}, s{sINB}
                        s_lshl_b32 s{sH1}, s{sH1}, 13
                        s_add_u32 s{sH1}, s{sH1}, {WS_PART + n*4096}'''
                    items.append((pre, f'buffer_load_dwordx4 {vr(recv[i] + 16*n + 4*q, 4)}, v{vL16}, {srd(SRD_WS)}, s{sH1} offen offset:{q*1024} sc1', 'pl'))
        pipe.push(items, hi=True)
    rcv_late = bool(late_flags) or RL <= 0
    if own and not rcv_late:
        gr_ = max(NG - RL, lastf)
        add(gr_ - FL, rcv_issue); add(gr_, rcv_get)
    if own:
        items = []
        for g4 in range(4):
            for n, (pan, e) in enumerate(own):
                for rr in range(4):
                    pre = f's_add_u32 s{sH2}, s{sOUT0}, {g4*5120}' if (n == 0 and rr == 0) else None
                    items.append((pre, f'buffer_load_dword v{accreg(pan, e) + 4*g4 + rr}, v{vO[rr & 1]}, {srd(SRD_BASE)}, s{sH2} offen offset:{(rr >> 1)*2560 + n*128} sc1', 'bl'))
        basef = a.capture(lambda: [ (a(i[0]) if i[0] else None, a.vmem(i[1], i[2])) for i in items ])
        fill.push(basef)
    if wide: push_more()
    emit_reads(reads(0), ('k2', 0)); emit_reads(reads(1), ('k2', 1))
    waited = set()
    for g in range(NG):
        for f in hooks.get(g, []): f()
        for st, e, kk in groups[g]:
            pos, pan = stages[st]
            tg = ('a2', pos, kk // 4)
            if tg not in waited and not (wide and pos == 0):
                waited.add(tg); pipe.ensure(tg); a.wait_vm(tg)
            if (pan, e) in own and 'bl' not in waited:
                waited.add('bl'); fill.flush(); a.wait_vm('bl')
        a.wait_lg(('k2', g))
        bar = mk_bar(g)
        if g == 0 and not wide:
            def bar0(inner=bar):
                if inner: inner()
                else:
                    a.wait_lg(); a('s_barrier'); push_more()
            bar = bar0
        ms = mfmas(g)
        if bar:
            pass
        run_group(pipe, fill, ms, reads(g + 2) if g + 2 < NG else [], ('k2', g + 2), bar)
    stamp(6)
    for f in late_flags: f()
    pipe.flush()
    if not own:
        a('s_endpgm'); return
    if rcv_late:
        rcv_issue(); rcv_get(); pipe.flush()
    stamp(7)
    a.wait_vm('pl')
    for n, (pan, e) in enumerate(own):
        q = accreg(pan, e)
        for i in range(0, 16, 2):
            a(f'v_pk_add_f32 {vr(recv[0] + 16*n + i, 2)}, {vr(recv[0] + 16*n + i, 2)}, {vr(recv[1] + 16*n + i, 2)}')
        for i in range(0, 16, 2):
            a(f'v_pk_add_f32 {vr(recv[0] + 16*n + i, 2)}, {vr(recv[0] + 16*n + i, 2)}, {vr(recv[2] + 16*n + i, 2)}')
    for g4 in range(4):
        a(f's_add_u32 s{sT2}, s{sOUT0}, {g4*5120}')
        for n, (pan, e) in enumerate(own):
            q = accreg(pan, e) + 4 * g4
            for i in (0, 2):
                a(f'v_pk_add_f32 {vr(q + i, 2)}, {vr(q + i, 2)}, {vr(recv[0] + 16*n + 4*g4 + i, 2)}')
            for rr in range(4):
                a.vmem(f'buffer_store_dword v{q + rr}, v{vO[rr & 1]}, {srd(SRD_OUT)}, s{sT2} offen offset:{(rr >> 1)*2560 + n*128}', 'out')
    stamp(8)
    a('s_endpgm')

def g2_branch(wide, pipe, have, pfx):
    st = a.state()
    a(f's_cmp_eq_u32 s{sK3}, 1\ns_cbranch_scc1 {pfx}_k3')
    gemm2(wide, False, pipe.clone(), have)
    a.label(f'{pfx}_k3')
    a.set_state(st)
    gemm2(wide, True, pipe.clone(), have)

PERIOD = opt('period', 64.0)
def prog_M():
    T = vT
    pipe = Pipe(PERIOD); fill = Fill()
    startup(False, pipe, fill)
    gemm1(False, pipe, fill, {3: stats_and_base, opt('pub', 26): publish_stats, 33: stats_load_issue, 38: stats_use})
    stamp(3)
    correction(False)
    a(f'v_mov_b32 v{T[0]}, v{GR+2}\nv_mul_f32 v{T[1]}, {LOG2E}, v{GR+2}')
    a(f's_mov_b32 s{sT3}, s{sA2P[0]}')
    TT = list(range(222, 238))
    for t in range(6):
        base = ACC + 16 * t
        for half in range(2):
            prs = [base + 8*half + 2*i for i in range(4)]
            tt = [TT[2*i] for i in range(4)]
            uu = [TT[8 + 2*i] for i in range(4)]
            for x, y in zip(prs, tt):
                a(f'v_pk_mul_f32 {vr(y,2)}, {vr(x,2)}, {vr(T[0],2)} op_sel:[0,1] op_sel_hi:[1,1]')
            for y in tt:
                a(f'v_exp_f32 v{y}, v{y}\nv_exp_f32 v{y+1}, v{y+1}')
            for x in prs:
                a(f'v_pk_mul_f32 {vr(x,2)}, {vr(x,2)}, {vr(T[0],2)} op_sel_hi:[1,0]')
            for y, u in zip(tt, uu):
                a(f'v_pk_fma_f32 {vr(u,2)}, {vr(y,2)}, -0.5, -1.0 op_sel_hi:[1,0,0]')
            for y, u in zip(tt, uu):
                a(f'v_pk_fma_f32 {vr(u,2)}, {vr(y,2)}, {vr(u,2)}, -1.0 op_sel_hi:[1,1,0]')
            for u in uu:
                a(f'v_rcp_f32 v{u}, v{u}\nv_rcp_f32 v{u+1}, v{u+1}')
            for x, u in zip(prs, uu):
                a(f'v_pk_fma_f32 {vr(x,2)}, {vr(x,2)}, {vr(u,2)}, {vr(x,2)}')
            f = 2 * t + half
            for i, x in enumerate(prs):
                a(f'v_cvt_pk_bf16_f32 v{OWN + 4*f + i}, v{x}, v{x+1}')
            a.vmem(f'buffer_store_dwordx4 {vr(OWN + 4*f, 4)}, v{vL16}, {srd(SRD_WS)}, s{sT3} offen offset:{(f % 4)*1024} sc1', 'a2s')
            if f % 4 == 3: a(f's_add_u32 s{sT3}, s{sT3}, 4096')
    a(f'v_mov_b32 v{vNO}, s{sNON}\nv_mov_b32 v{vNO+1}, s{sNON+1}')
    stamp(4)
    stamp(5)
    st = a.state()
    a(f's_cmp_lt_u32 s{sJJ}, 2\ns_cbranch_scc1 LM_narrow')
    g2_branch(True, pipe, set(), 'LW')
    a.label('LM_narrow')
    a.set_state(st)
    flag_store(None, OWNFLAG)
    narrow_fetch()
    a.wait_vm()
    a('s_branch LN_entry')

def narrow_fetch():
    a.vmem(flag_ld(sFA2), 'fl')
    a(f's_or_b32 s{sT2}, s{sMASK[0]}, s{sMASK[1]}')
    flag_check(sFA2, f's{sT2}')
    for pos in (0, 1):
        for pre, ld, tag in a2_items(pos, lambda f: ar(aQ + 48*pos + 4*f, 4)):
            if pre: a(pre)
            a.vmem(ld, tag)

def cmul(dr, di, ar_, ai, br, bi, cr, ci):
    a(f'''v_fma_f32 v{dr}, v{ar_}, v{br}, v{cr}
    v_fma_f32 v{di}, v{ar_}, v{bi}, v{ci}
    v_fma_f32 v{dr}, -v{ai}, v{bi}, v{dr}
    v_fma_f32 v{di}, v{ai}, v{br}, v{di}''')

def csq(dr, di, sr_, si, t):
    a(f'''v_mul_f32 v{t}, v{si}, v{si}
    v_add_f32 v{di}, v{si}, v{si}
    v_mul_f32 v{di}, v{di}, v{sr_}
    v_fma_f32 v{dr}, v{sr_}, v{sr_}, -v{t}''')

vAG, vDU, vPB, vPV = 176, 177, 238, vT[13]
vRSW, vRSR = vT[10], vT[11]
def s_consts():
    X = OWN + 44
    T = vT
    a.wait_vm('prm')
    for j in range(3):
        lr, li_, ld = CA8[j], CA8[j] + 1, CC[j]
        ar_, ai = CA[j], CA[j] + 1
        a(f'''v_lshlrev_b32 v{lr}, 16, v{lr}
        v_lshlrev_b32 v{li_}, 16, v{li_}
        v_lshlrev_b32 v{ld}, 16, v{ld}
        v_mul_f32 v{ld}, {LOG2E}, v{ld}
        v_exp_f32 v{ld}, v{ld}''')
        rbf(ld, ld)
        a(f'''v_mul_f32 v{X}, v{ld}, v{lr}
        v_mul_f32 v{X+1}, v{ld}, v{li_}
        v_mul_f32 v{X}, {LOG2E}, v{X}
        v_exp_f32 v{X}, v{X}
        v_mul_f32 v{X+1}, 0.15915494, v{X+1}
        v_rndne_f32 v{X+2}, v{X+1}
        v_sub_f32 v{X+1}, v{X+1}, v{X+2}
        v_cos_f32 v{X+2}, v{X+1}
        v_sin_f32 v{X+3}, v{X+1}
        v_mul_f32 v{ar_}, v{X}, v{X+2}
        v_mul_f32 v{ai}, v{X}, v{X+3}
        v_mul_f32 v{X}, v{lr}, v{lr}
        v_fma_f32 v{X}, v{li_}, v{li_}, v{X}
        v_rcp_f32 v{X}, v{X}
        v_add_f32 v{X+1}, -1.0, v{ar_}
        v_add_f32 v{X}, v{X}, v{X}
        v_mul_f32 v{X+2}, v{X+1}, v{lr}
        v_fma_f32 v{X+2}, v{ai}, v{li_}, v{X+2}
        v_mul_f32 v{X+3}, v{ai}, v{lr}
        v_fma_f32 v{X+3}, -v{X+1}, v{li_}, v{X+3}
        v_mul_f32 v{CC[j]}, v{X+2}, v{X}
        v_mul_f32 v{CC[j]+1}, v{X+3}, v{X}''')
        csq(CA8[j], CA8[j]+1, ar_, ai, X)
        csq(CA8[j], CA8[j]+1, CA8[j], CA8[j]+1, X)
        csq(CA8[j], CA8[j]+1, CA8[j], CA8[j]+1, X)
    a(f'''s_cmp_eq_u32 s{sW}, 1
    s_cselect_b64 vcc, -1, 0
    v_cndmask_b32 v{A16}, v{CA8[0]}, v{CA8[1]}, vcc
    v_cndmask_b32 v{A16+1}, v{CA8[0]+1}, v{CA8[1]+1}, vcc
    s_cmp_eq_u32 s{sW}, 2
    s_cselect_b64 vcc, -1, 0
    v_cndmask_b32 v{A16}, v{A16}, v{CA8[2]}, vcc
    v_cndmask_b32 v{A16+1}, v{A16+1}, v{CA8[2]+1}, vcc''')
    csq(A16, A16+1, A16, A16+1, X)
    csq(A128, A128+1, A16, A16+1, X)
    for _ in range(2): csq(A128, A128+1, A128, A128+1, X)
    csq(A1024, A1024+1, A128, A128+1, X)
    for _ in range(2): csq(A1024, A1024+1, A1024, A1024+1, X)
    a(f'''s_mul_i32 s{sT1}, s{sW}, {2*768}
    s_add_u32 s{sT1}, s{sT1}, {L_AG}
    v_mul_u32_u24 v{vAG}, 768, v{vH}
    v_lshl_add_u32 v{vAG}, v{vLI}, 3, v{vAG}
    v_add_u32 v{vAG}, s{sT1}, v{vAG}
    s_lshl_b32 s{sT1}, s{sW}, 8
    s_add_u32 s{sT1}, s{sT1}, {L_AG}
    v_lshl_add_u32 v{vDU}, v{vLI}, 3, s{sT1}
    s_lshl_b32 s{sT1}, s{sW}, 5
    s_add_u32 s{sT1}, s{sT1}, s{sBLK}
    v_add_u32 v{vPB}, s{sT1}, v{vLI}
    v_lshlrev_b32 v{vPB}, 4, v{vPB}
    s_sub_u32 s{sT2}, s{sR}, 1
    v_lshlrev_b32 v{vPV}, 3, v{vH}
    v_sub_u32 v{vPV}, s{sT2}, v{vPV}
    v_add_u32 v{X}, 9, v{vPV}
    v_mul_u32_u24 v{X}, {AGG_ROW}, v{X}
    v_add_u32 v{vPB}, v{vPB}, v{X}
    s_lshl_b32 s{sT1}, s{sW}, 7
    s_add_u32 s{sT1}, s{sT1}, {L_RS}
    v_lshl_add_u32 v{vRSW}, v{vLI}, 2, s{sT1}
    v_lshl_add_u32 v{vRSR}, v{vH}, 4, s{sT1}''')
    a(f's_sub_u32 s{sT4}, s{sA2P[3]}, 36864\ns_mul_i32 s{sT2}, s{sJJ}, 6144\ns_add_u32 s{sT2}, s{sT2}, s{sT4}')
    for t in range(6):
        a(f's_add_u32 s{sPC[t]}, s{sT2}, {((24 if t < 3 else 36) + 2*(t % 3)) * 1024}')
        if t % 3 == 2: a(f's_mov_b32 s{sT3}, {OOB}')
        else: a(f's_add_u32 s{sT3}, s{sT4}, {((36 if t < 3 else 40) + 2*(t % 3)) * 1024}')
        a(f's_cmp_eq_u32 s{sK3}, 1\ns_cselect_b32 s{sPC[t]}, s{sT3}, s{sPC[t]}')

RS = OWN + 24
def s_stats_use():
    stats_use()
    a.ds(f'ds_write_b32 v{vRSW}, v{GR+2}', 'rs')
    for g in range(4):
        a.ds(f'ds_read_b128 {vr(RS + 4*g, 4)}, v{vRSR} offset:{g*32}', 'rs')

def prog_S():
    T = vT
    pipe = Pipe(PERIOD); fill = Fill()
    startup(True, pipe, fill)
    gemm1(True, pipe, fill, {3: stats_and_base, 4: s_consts, opt('pub', 26): publish_stats, 33: stats_load_issue, 38: s_stats_use})
    stamp(3)
    correction(True)
    E = [OWN + 8*j for j in range(3)]
    RE_ = 'op_sel_hi:[0,1,1]'
    IM_ = 'op_sel:[1,0,0] op_sel_hi:[1,1,1]'
    NIM = IM_ + ' neg_lo:[1,0,0] neg_hi:[1,0,0]'
    for t in (0, 3, 1, 4, 2, 5):
        for i in range(8):
            x = ACC + 16*t + 2*i
            a(f'v_pk_mul_f32 {vr(x,2)}, {vr(x,2)}, {vr(RS + 2*i, 2)}')
    for i in range(1, 8):
        for j in range(3):
            ur, ui = ACC + 16*j + 2*i, ACC + 16*(3 + j) + 2*i
            er, ei = (E[j], E[j] + 2) if i > 1 else (ACC + 16*j, ACC + 16*(3 + j))
            a(f'v_pk_fma_f32 {vr(E[j]+4,2)}, {vr(CA[j],2)}, {vr(ei,2)}, {vr(ur,2)} {NIM}')
            a(f'v_pk_fma_f32 {vr(E[j]+6,2)}, {vr(CA[j],2)}, {vr(er,2)}, {vr(ui,2)} {IM_}')
        for j in range(3):
            er, ei = (E[j], E[j] + 2) if i > 1 else (ACC + 16*j, ACC + 16*(3 + j))
            a(f'v_pk_fma_f32 {vr(E[j],2)}, {vr(CA[j],2)}, {vr(er,2)}, {vr(E[j]+4,2)} {RE_}')
            a(f'v_pk_fma_f32 {vr(E[j]+2,2)}, {vr(CA[j],2)}, {vr(ei,2)}, {vr(E[j]+6,2)} {RE_}')
    for j in range(3):
        cmul(E[j]+4, E[j]+5, CA8[j], CA8[j]+1, E[j], E[j]+2, E[j]+1, E[j]+3)
        a.ds(f'ds_write_b64 v{vAG}, {vr(E[j]+4, 2)} offset:{j*256}', 'ag')
    a.wait_lg()
    a('s_barrier')
    SG = OWN + 24
    P = OWN + 40
    PG = [148, 152 - 0]
    st0 = a.state()
    a(f's_cmp_eq_u32 s{sW}, 3\ns_cbranch_scc1 LS_noduty')
    for s in range(8):
        a.ds(f'ds_read_b64 {vr(SG + 2*s, 2)}, v{vDU} offset:{s*768}', ('sg', s))
    a(f'v_mov_b32 v{P+6}, s{sNON}\nv_mov_b32 v{P+7}, s{sNON+1}\ns_mov_b32 s{sT2}, {WS_AGG + 8*AGG_ROW}')
    cur = SG
    for s in range(1, 8):
        a.wait_lg(('sg', s))
        nxt = P + 4 if s == 7 else (P if s % 2 else P + 2)
        cmul(nxt, nxt + 1, A16, A16 + 1, cur, cur + 1, SG + 2*s, SG + 2*s + 1)
        cur = nxt
    a('s_mov_b32 exec_hi, 0')
    a.vmem(f'buffer_store_dwordx4 {vr(P + 4, 4)}, v{vPB}, {srd(SRD_WS)}, s{sT2} offen sc1', 'agg')
    a('s_mov_b64 exec, -1')
    def poll_text():
        return '\n'.join(f's_mov_b32 s{sT2}, {WS_AGG + (7 - mm)*AGG_ROW}\nbuffer_load_dwordx4 {ar(4*mm, 4)}, v{vPB}, {srd(SRD_WS)}, s{sT2} offen sc1' for mm in range(8))
    a.label('LS_noduty')
    for j in range(3):
        for i in range(8):
            ur, ui = ACC + 16*j + 2*i, ACC + 16*(3 + j) + 2*i
            tq = T[4 + 2*(i % 3)]
            a(f'''v_pk_mul_f32 {vr(tq,2)}, {vr(CC[j],2)}, {vr(ui,2)} op_sel:[1,0] op_sel_hi:[1,1]
            v_pk_mul_f32 {vr(ui,2)}, {vr(CC[j],2)}, {vr(ui,2)} op_sel_hi:[0,1]
            v_pk_fma_f32 {vr(ui,2)}, {vr(CC[j],2)}, {vr(ur,2)}, {vr(ui,2)} {IM_}
            v_pk_fma_f32 {vr(ur,2)}, {vr(CC[j],2)}, {vr(ur,2)}, {vr(tq,2)} {RE_} neg_lo:[0,0,1] neg_hi:[0,0,1]''')
    a(f's_mul_i32 s{sT1}, s{sW}, 12288\ns_add_u32 s{sT1}, s{sT1}, {L_TR}')
    WA_ = VA
    a(f'v_bfe_u32 v{T[4]}, v{vLI}, 1, 3')
    for g in range(4):
        a(f'''v_add_u32 v{WA_[g]}, {2*g}, v{vH}
        v_xor_b32 v{WA_[g]}, v{WA_[g]}, v{T[4]}
        v_lshlrev_b32 v{WA_[g]}, 3, v{WA_[g]}
        v_lshl_add_u32 v{WA_[g]}, v{vLI}, 6, v{WA_[g]}
        v_add_u32 v{WA_[g]}, s{sT1}, v{WA_[g]}''')
    RD = [VB1[0], VB1[1]]
    for j in range(2):
        a(f'''v_bfe_u32 v{T[4]}, v{vL}, 2, 2
        v_lshl_add_u32 v{T[4]}, v{vH}, 3, v{T[4]}
        v_add_u32 v{T[4]}, {4*j}, v{T[4]}
        v_bfe_u32 v{T[5]}, v{vL}, 4, 1
        v_lshlrev_b32 v{T[5]}, 2, v{T[5]}
        v_and_b32 v{RD[j]}, 3, v{vL}
        v_or_b32 v{T[5]}, v{T[5]}, v{RD[j]}
        v_lshrrev_b32 v{RD[j]}, 1, v{T[4]}
        v_xor_b32 v{T[5]}, v{T[5]}, v{RD[j]}
        v_lshlrev_b32 v{T[5]}, 3, v{T[5]}
        v_lshl_add_u32 v{RD[j]}, v{T[4]}, 6, v{T[5]}
        v_add_u32 v{RD[j]}, s{sT1}, v{RD[j]}''')
    a(f'v_mov_b32 v{vNO}, s{sNON}\nv_mov_b32 v{vNO+1}, s{sNON+1}')
    a(f's_cmp_eq_u32 s{sW}, 3\ns_cbranch_scc1 LS_noduty2')
    G0 = WC
    a(f's_mov_b32 s{sSPIN}, 0')
    a.label('LS_prt')
    a(poll_text())
    a(f's_mov_b64 s[{sM0}:{sM0+1}], -1')
    for mm in range(8):
        a(f'''v_cmp_gt_i32 s[{sM1}:{sM1+1}], {mm}, v{vPV}
        s_waitcnt vmcnt({7 - mm})
        v_accvgpr_read_b32 v{G0}, a{4*mm+2}
        v_accvgpr_read_b32 v{G0+1}, a{4*mm+3}
        v_cmp_eq_u64 vcc, s[{sNON}:{sNON+1}], v[{G0}:{G0+1}]
        s_or_b64 vcc, vcc, s[{sM1}:{sM1+1}]
        s_and_b64 s[{sM0}:{sM0+1}], s[{sM0}:{sM0+1}], vcc''')
    a(f'''s_cmp_eq_u64 s[{sM0}:{sM0+1}], -1
    s_cbranch_scc1 LS_pok
    s_add_u32 s{sSPIN}, s{sSPIN}, 1
    s_cmp_lt_u32 s{sSPIN}, {SPIN_MAX}
    s_cbranch_scc1 LS_prt''')
    a.label('LS_pok')
    cur = None
    for mm in range(7, -1, -1):
        g = G0 + 2 * (mm & 1)
        a(f'''v_accvgpr_read_b32 v{g}, a{4*mm}
        v_accvgpr_read_b32 v{g+1}, a{4*mm+1}
        v_cmp_le_i32 vcc, {mm}, v{vPV}''')
        if cur is None:
            cur = P
            a(f'v_cndmask_b32 v{P}, 0, v{g}, vcc\nv_cndmask_b32 v{P+1}, 0, v{g+1}, vcc')
        else:
            nxt = P + 2 if cur == P else P
            a(f'v_cndmask_b32 v{g}, 0, v{g}, vcc\nv_cndmask_b32 v{g+1}, 0, v{g+1}, vcc')
            cmul(nxt, nxt + 1, A128, A128 + 1, cur, cur + 1, g, g + 1)
            cur = nxt
    a(f'''v_mov_b32 v{G0}, v{cur}
    v_mov_b32 v{G0+1}, v{cur+1}
    v_permlane32_swap_b32 v{cur}, v{G0}
    v_permlane32_swap_b32 v{cur+1}, v{G0+1}''')
    cmul(cur, cur + 1, A1024, A1024 + 1, G0, G0 + 1, cur, cur + 1)
    rot = [P, P + 2, P + 4]
    for s in range(8):
        a.ds(f'ds_write_b64 v{vDU}, {vr(cur, 2)} offset:{s*768}', 'st')
        if s < 7:
            nxt = rot[(rot.index(cur) + 1) % 3]
            cmul(nxt, nxt + 1, A16, A16 + 1, cur, cur + 1, SG + 2*s, SG + 2*s + 1)
            cur = nxt
    a.label('LS_noduty2')
    a('s_waitcnt lgkmcnt(0)'); a.lg = []
    a('s_barrier')
    a.vm = list(st0[0])
    stamp(4)
    for j in range(3):
        a.ds(f'ds_read_b64 {vr(E[j]+4, 2)}, v{vAG} offset:{j*256}', 'sa')
    a.vmem(flag_ld(sFA2), 'fl')
    a.wait_lg()
    H = [SG + 4*j for j in range(3)]
    for j in range(3):
        sa = E[j] + 4
        cmul(E[j]+1, E[j]+3, CA8[j], CA8[j]+1, sa, sa+1, E[j], E[j]+2)
        a(f'v_mov_b32 v{E[j]}, v{sa}\nv_mov_b32 v{E[j]+2}, v{sa+1}')
        a(f'''v_pk_mul_f32 {vr(H[j],2)}, {vr(CC[j],2)}, {vr(E[j],2)} op_sel_hi:[0,1]
        v_pk_mul_f32 {vr(H[j]+2,2)}, {vr(CC[j],2)}, {vr(E[j]+2,2)} op_sel_hi:[0,1]
        v_pk_fma_f32 {vr(H[j],2)}, {vr(CC[j],2)}, {vr(E[j]+2,2)}, {vr(H[j],2)} {NIM}
        v_pk_fma_f32 {vr(H[j]+2,2)}, {vr(CC[j],2)}, {vr(E[j],2)}, {vr(H[j]+2,2)} {IM_}''')
    for i in range(8):
        for j in range(3):
            ur, ui = ACC + 16*j + 2*i, ACC + 16*(3 + j) + 2*i
            hr, hi = (H[j], H[j] + 2) if i == 0 else (ur - 2, ui - 2)
            a(f'v_pk_fma_f32 {vr(ur,2)}, {vr(CA[j],2)}, {vr(hi,2)}, {vr(ur,2)} {NIM}')
            a(f'v_pk_fma_f32 {vr(ui,2)}, {vr(CA[j],2)}, {vr(hr,2)}, {vr(ui,2)} {IM_}')
        for j in range(3):
            ur, ui = ACC + 16*j + 2*i, ACC + 16*(3 + j) + 2*i
            hr, hi = (H[j], H[j] + 2) if i == 0 else (ur - 2, ui - 2)
            a(f'v_pk_fma_f32 {vr(ur,2)}, {vr(CA[j],2)}, {vr(hr,2)}, {vr(ur,2)} {RE_}')
            a(f'v_pk_fma_f32 {vr(ui,2)}, {vr(CA[j],2)}, {vr(hi,2)}, {vr(ui,2)} {RE_}')
    for t in range(6):
        ng = '-' if t >= 3 else ''
        for g in range(4):
            x = ACC + 16*t + 4*g
            a(f'v_cvt_pk_bf16_f32 v{x}, {ng}v{x}, {ng}v{x+1}\nv_cvt_pk_bf16_f32 v{x+1}, {ng}v{x+2}, {ng}v{x+3}')
            a.ds(f'ds_write_b64 v{WA_[g]}, {vr(x, 2)} offset:{t*2048}', 'tw')
        for f in range(2):
            for j in range(2):
                a.ds(f'ds_read_b64_tr_b16 {vr(OWN + 8*t + 4*f + 2*j, 2)}, v{RD[j]} offset:{t*2048 + f*1024}', ('trd', t))
        if t >= 1:
            a.wait_lg(('trd', t - 1))
            for f in range(2):
                a.vmem(f'buffer_store_dwordx4 {vr(OWN + 8*(t-1) + 4*f, 4)}, v{vL16}, {srd(SRD_WS)}, s{sPC[t-1]} offen offset:{f*1024} sc1', 'a2s')
    a.wait_lg(('trd', 5))
    for f in range(2):
        a.vmem(f'buffer_store_dwordx4 {vr(OWN + 40 + 4*f, 4)}, v{vL16}, {srd(SRD_WS)}, s{sPC[5]} offen offset:{f*1024} sc1', 'a2s')
    a(f's_or_b32 s{sT2}, s{sMASK[0]}, s{sMASK[1]}')
    flag_check(sFA2, f's{sT2}')
    for pos in (0, 1):
        for pre, ld, tag in a2_items(pos, lambda f: ar(aQ + 48*pos + 4*f, 4)):
            if pre: a(pre)
            a.vmem(ld, tag)
    stamp(5)
    a.label('LN_entry')
    g2_branch(False, pipe, {0, 1}, 'LN')

ids()
st = a.state()
a(f's_cmp_eq_u32 s{sISS}, 1\ns_cbranch_scc1 L_progS')
prog_M()
a.label('L_progS')
a.set_state(st)
prog_S()
a.label('L_end')
a('s_endpgm')

body = a.padded()
hdr = open(os.path.join(os.path.dirname(__file__), '..', 'cdna_kernels', NAME + '.s.ref')).read().split('; Override')[0]
out = hdr + f'''; generated by gen/gen3.py (hand-written generator)
; @launch grid=(256,1,1) block=(256,1,1) lds=163840
.amdgcn_target "amdgcn-amd-amdhsa--gfx950"
.text
.globl {NAME}_kernel
.p2align 8
.type {NAME}_kernel,@function
{NAME}_kernel:
''' + '\n'.join(('' if l.endswith(':') else '    ') + l for l in body) + f'''
.section .rodata,"a"
.p2align 6
.amdhsa_kernel {NAME}_kernel
  .amdhsa_next_free_vgpr 512
  .amdhsa_next_free_sgpr 102
  .amdhsa_accum_offset 256
  .amdhsa_group_segment_fixed_size 0
  .amdhsa_kernarg_size 128
  .amdhsa_user_sgpr_count 2
  .amdhsa_user_sgpr_kernarg_segment_ptr 1
  .amdhsa_system_sgpr_workgroup_id_x 1
  .amdhsa_float_denorm_mode_32 3
.end_amdhsa_kernel
'''
open(sys.argv[1], 'w').write(out)
print('lines', len(body), 'nops inserted', a.nops_inserted)
```
